```python
import torch

def _softmax(x, axis=-1):
    return torch.softmax(x, dim=axis)
def _gelu(x):
    return torch.nn.functional.gelu(x, approximate="tanh")
def _silu(x):
    return torch.nn.functional.silu(x)
def _sigmoid(x):
    return torch.sigmoid(x)
def _layernorm(x, axis=-1, eps=1e-5):
    m = x.mean(dim=axis, keepdim=True)
    v = x.var(dim=axis, keepdim=True, unbiased=False)
    return (x - m) / torch.sqrt(v + eps)
def _scatter_add(tgt, idx, src, axis=0):
    return tgt.clone().index_add_(axis, idx, src)
def _segment_sum(src, seg, n):
    out = torch.zeros((n,) + src.shape[1:], dtype=src.dtype)
    return out.index_add_(0, seg, src)
def _pad(x, pw):
    flat = tuple(v for pair in reversed(pw) for v in pair)
    return torch.nn.functional.pad(x, flat)

kernel_name = 'parallel_sum__gqa_block_cached__glu_gated_swiglu__decode'

def setup_inputs():

    _w = (lambda a: (lambda t: t.to(torch.bfloat16) if t.is_floating_point() else t)(torch.as_tensor(a)))
    def _A_setup():
        B, Sq, D = 1, 1, 640
        Hq, Hkv, Sk, Dh = 32, 32, 8192, 128
        assert Hq % Hkv == 0, (Hq, Hkv)
        return {
            "x": _w((lambda *s: torch.randn(*s, dtype=torch.bfloat16) * 0.05)(B, Sq, D)),
            "k_cache": _w((lambda *s: torch.randn(*s, dtype=torch.bfloat16) * 1.6)(B, Hkv, Sk, Dh)),
            "v_cache": _w((lambda *s: torch.randn(*s, dtype=torch.bfloat16) * 0.8)(B, Hkv, Sk, Dh)),
            "wq": _w((lambda *s: torch.randn(*s, dtype=torch.bfloat16) * 1.6)(D, Hq * Dh) * (D ** -0.5)),
            "wo": _w((lambda *s: torch.randn(*s, dtype=torch.bfloat16) * 0.8)(Hq * Dh, D) * ((Hq * Dh) ** -0.5)),
        }
    _A_in = _A_setup()

    def _B_setup():
        B, S, D, F = 1, 1, 640, 1728
        return {
            "x": _w((lambda *s: torch.randn(*s, dtype=torch.bfloat16) * 0.05)(B, S, D)),
            "w1": _w((lambda *s: torch.randn(*s, dtype=torch.bfloat16) * 0.4)(D, F) * (2.0 / D) ** 0.5),
            "w3": _w((lambda *s: torch.randn(*s, dtype=torch.bfloat16) * 0.4)(D, F) * (2.0 / D) ** 0.5),
            "w2": _w((lambda *s: torch.randn(*s, dtype=torch.bfloat16) * 0.4)(F, D) * (2.0 / F) ** 0.5),
        }
    _B_in = _B_setup()

    return {
        "A_x": _A_in["x"],
        "A_k_cache": _A_in["k_cache"],
        "A_v_cache": _A_in["v_cache"],
        "A_wq": _A_in["wq"],
        "A_wo": _A_in["wo"],
        "B_x": _B_in["x"],
        "B_w1": _B_in["w1"],
        "B_w3": _B_in["w3"],
        "B_w2": _B_in["w2"],
    }

def reference(A_x, A_k_cache, A_v_cache, A_wq, A_wo, B_x, B_w1, B_w3, B_w2):
    def _A_ref(x, k_cache, v_cache, wq, wo):
        B, Sq, D = x.shape
        Hq, Dh = 32, 128
        Hkv = k_cache.shape[1]
        rep = Hq // Hkv
        q = (lambda x, *d: x.permute(*d))((x @ wq).reshape(B, Sq, Hq, Dh), 0, 2, 1, 3)
        k = (lambda x, n, axis: torch.repeat_interleave(x, n, dim=axis))(k_cache, rep, axis=1)
        v = (lambda x, n, axis: torch.repeat_interleave(x, n, dim=axis))(v_cache, rep, axis=1)
        scores = torch.einsum("bhqd,bhkd->bhqk", q, k) * (Dh ** -0.5)
        p = _softmax(scores, axis=-1)
        o = torch.einsum("bhqk,bhkd->bhqd", p, v)
        return (lambda x, *d: x.permute(*d))(o, 0, 2, 1, 3).reshape(B, Sq, Hq * Dh) @ wo

    def _B_ref(x, w1, w3, w2):
        gate = torch.einsum("bsd,df->bsf", x, w1)
        up = torch.einsum("bsd,df->bsf", x, w3)
        h = _silu(gate) * up
        out = torch.einsum("bsf,fd->bsd", h, w2)
        return out

    x = A_x
    xn = _layernorm(x, axis=-1)
    return x + _A_ref(xn, A_k_cache, A_v_cache, A_wq, A_wo) + _B_ref(xn, B_w1, B_w3, B_w2)
```

```python
import re

TRANS = ("v_exp_f32", "v_log_f32", "v_rcp_f32", "v_rsq_f32", "v_sqrt_f32", "v_sin_f32", "v_cos_f32")

def regs_of(op):
    op = op.strip()
    neg = op.lstrip('-')
    m = re.fullmatch(r"(?:abs\()?([vsa])(\d+)\)?", neg)
    if m: return [(m.group(1), int(m.group(2)))]
    m = re.fullmatch(r"([vsa])\[(\d+):(\d+)\]", neg)
    if m: return [(m.group(1), i) for i in range(int(m.group(2)), int(m.group(3)) + 1)]
    if neg == "vcc": return [("vcc", 0)]
    if neg == "exec": return [("exec", 0)]
    if neg in ("vcc_lo", "vcc_hi"): return [("vcc", 0)]
    if neg == "m0": return [("m0", 0)]
    return []

class Ins:
    def __init__(self, text):
        self.text = text
        t = text.split(";")[0].strip()
        self.label = t.endswith(":")
        self.directive = t.startswith(".")
        self.empty = (t == "")
        self.defs = []; self.uses = []
        self.mn = ""
        if self.label or self.directive or self.empty: return
        parts = t.split(None, 1)
        self.mn = parts[0]
        rest = parts[1] if len(parts) > 1 else ""
        ops = []; depth = 0; cur = ""
        for ch in rest:
            if ch == "[": depth += 1
            if ch == "]": depth -= 1
            if ch == "," and depth == 0:
                ops.append(cur.strip()); cur = ""
            else: cur += ch
        if cur.strip(): ops.append(cur.strip())
        mods = ""
        if ops:
            last = ops[-1].split(None, 1)
            ops[-1] = last[0]
            if len(last) > 1: mods = last[1]
        self.ops = ops; self.mods = mods
        mn = self.mn
        self.is_valu = mn.startswith("v_")
        self.is_mfma = mn.startswith("v_mfma")
        self.is_salu = mn.startswith("s_")
        self.is_ds = mn.startswith("ds_")
        self.is_vmem = mn.startswith("buffer_") or mn.startswith("global_")
        self.is_dpp = ("_dpp" in mn) or any(k in (mods + " " + rest) for k in ("row_ror", "row_shr", "row_shl", "quad_perm", "row_mirror", "row_half_mirror", "row_newbcast", "row_bcast"))
        self.is_trans = any(mn.startswith(x) for x in TRANS)
        self.is_dot = mn.startswith("v_dot")
        self.is_perml = mn.startswith("v_permlane")
        R = [regs_of(o) for o in ops]
        flat = lambda xs: [r for x in xs for r in x]
        if self.is_valu:
            base = mn.replace("_e32", "").replace("_e64", "").replace("_dpp", "")
            if base.startswith("v_cmp"):
                self.defs = R[0]; self.uses = flat(R[1:])
            elif base in ("v_readfirstlane_b32", "v_readlane_b32"):
                self.defs = R[0]; self.uses = flat(R[1:])
            elif self.is_perml:
                self.defs = R[0] + R[1]; self.uses = R[0] + R[1]
            elif base in ("v_add_co_u32", "v_sub_co_u32", "v_addc_co_u32"):
                self.defs = R[0] + R[1]; self.uses = flat(R[2:])
            else:
                self.defs = R[0]; self.uses = flat(R[1:])
                if base in ("v_fmac_f32", "v_dot2c_f32_bf16", "v_writelane_b32"):
                    self.uses = self.uses + R[0]
                if base == "v_cndmask_b32" and len(ops) == 3:
                    self.uses = self.uses + [("vcc", 0)]
                if self.is_dpp and ("bank_mask" in mods or "row_mask" in mods):
                    self.uses = self.uses + R[0]
        elif self.is_ds:
            if "read" in mn or "bpermute" in mn or "swizzle" in mn:
                self.defs = R[0]; self.uses = flat(R[1:])
            else:
                self.uses = flat(R)
        elif self.is_vmem:
            if "_load" in mn and "lds" not in mods:
                self.defs = R[0]; self.uses = flat(R[1:])
            elif "atomic" in mn and "sc0" in mods:
                self.defs = R[0]; self.uses = flat(R)
            else:
                self.uses = flat(R)
        elif self.is_salu:
            if mn.startswith("s_cmp") or mn.startswith("s_bitcmp") or mn in ("s_waitcnt", "s_nop", "s_barrier", "s_sleep", "s_setprio", "s_endpgm") or mn.startswith("s_cbranch") or mn == "s_branch":
                self.uses = flat(R)
            else:
                self.defs = R[0] if R else []; self.uses = flat(R[1:])
                if "saveexec" in mn: self.defs = self.defs + [("exec", 0)]
    def states(self):
        if self.label or self.directive or self.empty: return 0
        if self.mn == "s_nop": return int(self.ops[0], 0) + 1
        return 1

def need(p, c):
    n = 0
    pd = set(p.defs); cu = set(c.uses); cd = set(c.defs)
    raw = pd & cu; waw = pd & cd
    vraw = {r for r in raw if r[0] in "va"}
    vwaw = {r for r in waw if r[0] in "va"}
    if p.is_mfma:
        big = "32x32" in p.mn
        d_valu = 12 if big else 8
        if c.is_mfma:
            A = set(regs_of(c.ops[1])); B = set(regs_of(c.ops[2])); C = set(regs_of(c.ops[3]))
            if pd & (A | B): n = max(n, d_valu)
            if pd & C:
                if set(regs_of(p.ops[0])) == C: pass
                else: n = max(n, 10 if big else 6)
        else:
            if vraw or vwaw: n = max(n, d_valu)
        if c.is_valu and not c.is_mfma:
            C = set(regs_of(p.ops[3]))
            if C & cd: n = max(n, 7 if big else 3)
        return n
    if p.is_valu:
        if vraw and c.is_dpp: n = max(n, 2)
        if (vraw or vwaw) and c.is_perml: n = max(n, 2)
        if vraw and c.is_mfma: n = max(n, 2)
        if p.is_trans and vraw and c.is_valu and not c.is_trans: n = max(n, 1)
        if p.is_trans and vraw and c.is_valu and c.is_trans: n = max(n, 1)
        if p.is_dot:
            if (vraw or vwaw):
                if c.is_dot and c.mn == p.mn:
                    ab = set(regs_of(c.ops[1])) | set(regs_of(c.ops[2]))
                    if pd & ab: n = max(n, 3)
                else:
                    n = max(n, 3)
        sraw = {r for r in raw if r[0] in ("s", "vcc")}
        if sraw:
            if c.is_valu:
                n = max(n, 4 if c.mn.startswith(("v_readlane", "v_writelane")) else 2)
            if c.is_vmem: n = max(n, 5)
            if c.is_salu: n = max(n, 1)
        if vraw and c.mn.startswith(("v_readlane", "v_readfirstlane")): n = max(n, 1)
        if ("exec", 0) in pd and c.is_valu: n = max(n, 5)
    if p.is_vmem and ("store" in p.mn) and ("x4" in p.mn or "x3" in p.mn):
        data = set()
        data = set(regs_of(p.ops[0])) if p.mn.startswith("buffer") else set(regs_of(p.ops[1]))
        if data & cd: n = max(n, 2)
    if p.is_salu and ("m0", 0) in pd and (c.is_vmem and "lds" in c.mods): n = max(n, 1)
    return n

class Asm:
    def __init__(self):
        self.lines = []
    def __call__(self, text):
        for t in text.split("\n"):
            self.lines.append(t)
    def finish(self):
        out = []
        hist = []
        for t in self.lines:
            ins = Ins(t)
            if ins.label or ins.directive or ins.empty:
                out.append(t if (ins.label or ins.directive) else t)
                continue
            dist = 0; req = 0
            for p in reversed(hist):
                nn = need(p, ins)
                if nn > dist: req = max(req, nn - dist)
                dist += p.states()
                if dist >= 13: break
            while req > 0:
                k = min(req, 16)
                nop = Ins(f"s_nop {k-1}")
                out.append(f"  s_nop {k-1}")
                hist.append(nop); req -= k
            out.append("  " + t.strip())
            hist.append(ins)
            if len(hist) > 40: hist = hist[-40:]
        return "\n".join(out) + "\n"
```

```python
import sys, os, argparse
sys.path.insert(0, os.path.dirname(os.path.abspath(__file__)))
from asmlib import Asm

NAME = "parallel_sum__gqa_block_cached__glu_gated_swiglu__decode"
KN = NAME + "_kernel"
HDR = open(f"cdna_kernels/{NAME}.s.ref").read().split("; Override launch")[0]

H0Q, H0F, H1O, H1ML, H2, STAMP = 0x0, 0x40000, 0x80000, 0xC0000, 0xD0000, 0x100000
WS_SIZE = 0x200000
TAG = 0x5AC3A5C3
XN0, XN1, QL, HL = 0x000, 0x500, 0xA00, 0xB00
QFLAG, GFLAG, GML, MLF, ML = 0xB80, 0xB84, 0xB88, 0xBA0, 0xBC0
OL, YL, GU = 0xC00, 0x1C00, 0x2C00
LDS_SIZE = 0x3000
LOG2E = 0x3FB8AA3B
SCALE = 0x3DB504F3
OOB = 0x40000000
SPIN_LDS = 1 << 16
SPIN_GLB = 1 << 12
RING = 40


class G:
    def __init__(self, D=4, N1=24, DW=10, stamps=False, gmlpos=24, prefetch=False):
        self.A = Asm()
        self.D, self.N1, self.DW, self.stamps, self.gmlpos, self.prefetch = D, N1, DW, stamps, gmlpos, prefetch
        self.lbl = 0

    def L(self, base):
        self.lbl += 1
        return f"L_{base}_{self.lbl}"

    def stamp(self, k):
        if self.stamps:
            self.A(f"s_memrealtime s[{70+2*k}:{71+2*k}]")

    def write_stamps(self, first_slot, n, vt=4):
        if not self.stamps: return
        A = self.A
        A("s_waitcnt lgkmcnt(0)")
        A("s_mov_b64 exec, 1")
        A(f"s_lshl_b32 s68, s2, 8")
        A(f"s_add_u32 s68, s68, {STAMP + first_slot*8}")
        A(f"v_mov_b32 v{vt}, s68")
        for k in range(n):
            A(f"v_mov_b32 v{vt+2}, s{70+2*k}")
            A(f"v_mov_b32 v{vt+3}, s{71+2*k}")
            A(f"buffer_store_dwordx2 v[{vt+2}:{vt+3}], v{vt}, s[56:59], 0 offen offset:{k*8}")
            A("s_waitcnt vmcnt(0)")
        A("s_mov_b64 exec, -1")

    def srd(self, base, lo, size):
        A = self.A
        A(f"s_mov_b32 s{base}, s{lo}"); A(f"s_mov_b32 s{base+1}, s{lo+1}")
        A(f"s_mov_b32 s{base+2}, {size:#x}"); A(f"s_mov_b32 s{base+3}, 0x20000")

    def spin_lds(self, off, vtmp, vzero, scnt="s14", stmp="s15"):
        A = self.A
        l0, l1 = self.L("sp"), self.L("spd")
        A(f"s_mov_b32 {scnt}, {SPIN_LDS}")
        A(f"{l0}:")
        A(f"ds_read_b32 v{vtmp}, v{vzero} offset:{off}")
        A("s_waitcnt lgkmcnt(0)")
        A(f"v_readfirstlane_b32 {stmp}, v{vtmp}")
        A("s_nop 0")
        A(f"s_cmp_lg_u32 {stmp}, 0")
        A(f"s_cbranch_scc1 {l1}")
        A(f"s_sub_u32 {scnt}, {scnt}, 1")
        A(f"s_cmp_lg_u32 {scnt}, 0")
        A(f"s_cbranch_scc1 {l0}")
        A(f"{l1}:")

    def red16(self, op, v, full=True):
        A = self.A
        for n in (8, 4, 2, 1):
            A(f"{op}_dpp v{v}, v{v}, v{v} row_ror:{n} row_mask:0xf bank_mask:0xf")

    def red64_lane63(self, op, v):
        A = self.A
        self.red16(op, v)
        A(f"{op}_dpp v{v}, v{v}, v{v} row_bcast:15 row_mask:0xa bank_mask:0xf")
        A(f"{op}_dpp v{v}, v{v}, v{v} row_bcast:31 row_mask:0xc bank_mask:0xf")

    def red8(self, op, v):
        A = self.A
        A(f"{op}_dpp v{v}, v{v}, v{v} quad_perm:[1,0,3,2] row_mask:0xf bank_mask:0xf")
        A(f"{op}_dpp v{v}, v{v}, v{v} quad_perm:[2,3,0,1] row_mask:0xf bank_mask:0xf")
        A(f"{op}_dpp v{v}, v{v}, v{v} row_half_mirror row_mask:0xf bank_mask:0xf")

    def masks(self, m0, t0, t1):
        A = self.A
        A(f"v_and_b32 v{t0}, 1, v0")
        A(f"v_lshlrev_b32 v{t0}, 4, v{t0}")
        A(f"v_mov_b32 v{t1}, 0xffff")
        A(f"v_lshlrev_b32 v{t0}, v{t0}, v{t1}")
        A(f"v_bfe_u32 v{t1}, v0, 1, 2")
        A(f"v_mov_b32 v{m0}, 1")
        A(f"v_lshlrev_b32 v{t1}, v{t1}, v{m0}")
        for r in range(4):
            A(f"v_bfe_i32 v{m0+r}, v{t1}, {r}, 1")
        for r in range(4):
            A(f"v_and_b32 v{m0+r}, v{m0+r}, v{t0}")

    def layernorm(self, xn_off):
        A = self.A
        for i in range(5):
            A(f"v_lshlrev_b32 v{10+2*i}, 16, v{4+i}")
            A(f"v_and_b32 v{11+2*i}, 0xffff0000, v{4+i}")
        A("v_add_f32 v20, v10, v11")
        for i in range(2, 10):
            A(f"v_add_f32 v20, v20, v{10+i}")
        self.red64_lane63("v_add_f32", 20)
        A("v_readlane_b32 s14, v20, 63")
        A(f"v_mov_b32 v21, 0x3acccccd")
        A("v_mul_f32 v21, s14, v21")
        A("v_sub_f32 v22, v10, v21")
        A("v_mul_f32 v20, v22, v22")
        for i in range(1, 10):
            A(f"v_sub_f32 v22, v{10+i}, v21")
            A("v_fmac_f32 v20, v22, v22")
        self.red64_lane63("v_add_f32", 20)
        A("v_readlane_b32 s14, v20, 63")
        A(f"v_mov_b32 v22, 0x3acccccd")
        A("v_mul_f32 v22, s14, v22")
        A("v_cvt_pk_bf16_f32 v23, v21, v22")
        A("v_lshlrev_b32 v21, 16, v23")
        A("v_and_b32 v22, 0xffff0000, v23")
        A("v_add_f32 v22, 0x3727c5ac, v22")
        A("v_cvt_pk_bf16_f32 v22, v22, v22")
        A("v_and_b32 v22, 0xffff0000, v22")
        A("v_sqrt_f32 v22, v22")
        A("v_cvt_pk_bf16_f32 v22, v22, v22")
        A("v_and_b32 v22, 0xffff0000, v22")
        A("v_rcp_f32 v23, v22")
        for i in range(5):
            a, b = 10 + 2*i, 11 + 2*i
            A(f"v_sub_f32 v{a}, v{a}, v21")
            A(f"v_sub_f32 v{b}, v{b}, v21")
            A(f"v_cvt_pk_bf16_f32 v24, v{a}, v{b}")
            A(f"v_lshlrev_b32 v{a}, 16, v24")
            A(f"v_and_b32 v{b}, 0xffff0000, v24")
            A(f"v_mul_f32 v25, v{a}, v23")
            A(f"v_mul_f32 v26, v{b}, v23")
            A(f"v_fma_f32 v27, -v25, v22, v{a}")
            A(f"v_fma_f32 v28, -v26, v22, v{b}")
            A(f"v_fmac_f32 v25, v27, v23")
            A(f"v_fmac_f32 v26, v28, v23")
            A(f"v_cvt_pk_bf16_f32 v{4+i}, v25, v26")
        A("v_lshlrev_b32 v9, 2, v0")
        A(f"ds_write2st64_b32 v9, v4, v5 offset0:{xn_off//256} offset1:{xn_off//256+1}")
        A(f"ds_write2st64_b32 v9, v6, v7 offset0:{xn_off//256+2} offset1:{xn_off//256+3}")
        A(f"ds_write_b32 v9, v8 offset:{xn_off+1024}")

    def poll_loop(self, issue, check_regs, tmp, sc="s14"):
        A = self.A
        l0, l1 = self.L("pl"), self.L("pld")
        A(f"s_mov_b32 {sc}, {SPIN_GLB}")
        A(f"{l0}:")
        issue()
        A("s_waitcnt vmcnt(0)")
        regs = list(check_regs)
        if len(regs) == 1:
            A(f"v_cmp_eq_u32 vcc, s69, v{regs[0]}")
        else:
            first = True
            cur = None
            i = 0
            if len(regs) == 2:
                A(f"v_min_u32 v{tmp}, v{regs[0]}, v{regs[1]}")
            else:
                A(f"v_min3_u32 v{tmp}, v{regs[0]}, v{regs[1]}, v{regs[2]}")
                i = 3
                while i < len(regs):
                    if i + 1 < len(regs):
                        A(f"v_min3_u32 v{tmp}, v{tmp}, v{regs[i]}, v{regs[i+1]}"); i += 2
                    else:
                        A(f"v_min_u32 v{tmp}, v{tmp}, v{regs[i]}"); i += 1
            A(f"v_cmp_eq_u32 vcc, s69, v{tmp}")
        A("s_nop 1")
        A("s_cmp_eq_u64 vcc, -1")
        A(f"s_cbranch_scc1 {l1}")
        A(f"s_sub_u32 {sc}, {sc}, 1")
        A(f"s_cmp_lg_u32 {sc}, 0")
        A(f"s_cbranch_scc1 {l0}")
        A(f"{l1}:")

    def prologue(self):
        A = self.A
        A("s_cmp_ge_u32 s2, 256")
        A("s_cbranch_scc1 L_end")
        if self.stamps:
            A("s_memrealtime s[70:71]")
        A("s_load_dwordx16 s[16:31], s[0:1], 0")
        A("s_load_dwordx8 s[32:39], s[0:1], 64")
        A("v_lshrrev_b32 v1, 6, v0")
        A("v_and_b32 v0, 63, v0")
        A("s_and_b32 s4, s2, 7")
        A("v_readfirstlane_b32 s3, v1")
        A("s_lshr_b32 s5, s2, 3")
        A("s_and_b32 s6, s5, 3")
        A("s_lshl_b32 s4, s4, 2")
        A("s_add_u32 s4, s4, s6")
        A("s_lshr_b32 s5, s5, 2")
        A("s_lshl_b32 s6, s4, 3")
        A("s_add_u32 s6, s6, s5")
        A(f"s_mov_b32 s69, {TAG:#x}")
        A("s_cmp_ge_u32 s3, 8")
        A("s_cbranch_scc1 L_aux")

    def streaming(self):
        A = self.A
        D, N1 = self.D, self.N1
        A("s_lshl_b32 s7, s4, 21")
        A("s_lshl_b32 s8, s5, 18")
        A("s_add_u32 s7, s7, s8")
        A("s_lshl_b32 s8, s3, 10")
        A("s_add_u32 s7, s7, s8")
        A("v_lshlrev_b32 v1, 4, v0")
        A("v_add_u32 v1, s7, v1")
        A("s_mov_b32 s42, 0x4000000"); A("s_mov_b32 s43, 0x20000")
        A("s_mov_b32 s46, 0x4000000"); A("s_mov_b32 s47, 0x20000")
        A("s_mov_b32 s7, 0")
        A("s_waitcnt lgkmcnt(0)")
        A("s_mov_b32 s40, s18"); A("s_mov_b32 s41, s19")
        loads = [("K", j) for j in range(32)] + [("V", j) for j in range(32)] + [("W", j) for j in range(6)]
        NL = len(loads)
        st = dict(issued=0, arrived=-1)
        consumed = set()

        def slot(i): return RING + (i % 32) * 4

        def issue(i):
            kind, j = loads[i]
            r = slot(i)
            if i >= 32: assert (i - 32) in consumed, f"slot for load {i} not free"
            if kind in "KV":
                srd = "s[40:43]" if kind == "K" else "s[44:47]"
                if kind == "V" and j == 0:
                    A("s_mov_b32 s7, 0")
                A(f"buffer_load_dwordx4 v[{r}:{r+3}], v1, {srd}, s7 offen nt")
                if j < 31:
                    A("s_add_u32 s7, s7, 0x2000")
            else:
                if j < 2:
                    A(f"buffer_load_dwordx4 v[{r}:{r+3}], v3, s[52:55], 0 offen offset:{j*1280} nt")
                else:
                    A(f"buffer_load_dwordx4 v[{r}:{r+3}], v2, s[48:51], 0 offen offset:{(j-2)*1280} nt")
            st["issued"] += 1

        def need(i):
            if st["arrived"] >= i: return
            A(f"s_waitcnt vmcnt({st['issued'] - 1 - i})")
            st["arrived"] = i

        def kgroup(p):
            rs = [slot(4*p + u) for u in range(4)]
            for k in range(4):
                for u in range(4):
                    c = "0" if k == 0 else f"v{26+u}"
                    A(f"v_dot2_f32_bf16 v{26+u}, v{rs[u]+k}, v{4+k}, {c}")
            A("v_add_f32_dpp v30, v26, v26 row_ror:8 row_mask:0xf bank_mask:0x3")
            A("v_add_f32_dpp v31, v28, v28 row_ror:8 row_mask:0xf bank_mask:0x3")
            A("v_add_f32_dpp v30, v27, v27 row_ror:8 row_mask:0xf bank_mask:0xc")
            A("v_add_f32_dpp v31, v29, v29 row_ror:8 row_mask:0xf bank_mask:0xc")
            A("v_add_f32_dpp v32, v30, v30 row_half_mirror row_mask:0xf bank_mask:0x5")
            A("v_add_f32_dpp v32, v31, v31 row_half_mirror row_mask:0xf bank_mask:0xa")
            A("v_add_f32_dpp v32, v32, v32 quad_perm:[1,0,3,2] row_mask:0xf bank_mask:0xf")
            S = 24 + (p >> 2)
            if (p & 3) == 0:
                A(f"v_add_f32_dpp v{S}, v32, v32 quad_perm:[2,3,0,1] row_mask:0xf bank_mask:0xf")
            else:
                A(f"v_add_f32_dpp v32, v32, v32 quad_perm:[2,3,0,1] row_mask:0xf bank_mask:0xf")
                m = 8 + 2 * ((p & 3) - 1)
                A(f"v_cndmask_b32_e64 v{S}, v{S}, v32, s[{m}:{m+1}]")
            for u in range(4): consumed.add(4*p + u)

        def softmax():
            A("v_cvt_pk_bf16_f32 v26, v24, v25")
            A("v_lshlrev_b32 v24, 16, v26")
            A("v_and_b32 v25, 0xffff0000, v26")
            A(f"v_mul_f32 v24, {SCALE:#x}, v24")
            A(f"v_mul_f32 v25, {SCALE:#x}, v25")
            A("v_cvt_pk_bf16_f32 v26, v24, v25")
            A("v_lshlrev_b32 v24, 16, v26")
            A("v_and_b32 v25, 0xffff0000, v26")
            A("v_max_f32 v27, v24, v25")
            self.red64_lane63("v_max_f32", 27)
            A("v_readlane_b32 s60, v27, 63")
            A("v_subrev_f32 v24, s60, v24")
            A("v_subrev_f32 v25, s60, v25")
            A(f"v_mul_f32 v24, {LOG2E:#x}, v24")
            A(f"v_mul_f32 v25, {LOG2E:#x}, v25")
            A("v_exp_f32 v24, v24")
            A("v_exp_f32 v25, v25")
            A("v_add_f32 v27, v24, v25")
            A("v_cvt_pk_bf16_f32 v24, v24, v24")
            A("v_cvt_pk_bf16_f32 v25, v25, v25")
            self.red64_lane63("v_add_f32", 27)
            A("v_readlane_b32 s61, v27, 63")
            A("v_mov_b32 v28, s60")
            A("v_mov_b32 v29, s61")
            A("s_lshl_b32 s14, s3, 3")
            A("v_mov_b32 v30, s14")
            A("s_lshl_b32 s14, s3, 2")
            A("v_mov_b32 v31, s14")
            A("v_mov_b32 v32, 1")
            A("s_mov_b64 exec, 1")
            A(f"ds_write_b64 v30, v[28:29] offset:{ML}")
            A(f"ds_write_b32 v31, v32 offset:{MLF}")
            A("s_mov_b64 exec, -1")
            self.stamp(3)

        def tile_of(j):
            p = (j >> 2) & 3; u = j & 3
            q = [0, 2, 1, 3][u]
            return 24 + (j >> 4), 4 * q + p

        def buildA(j):
            P, c = tile_of(j)
            a = 12 + (j & 1) * 4
            for r in range(4):
                A(f"v_and_b32_dpp v{a+r}, v{P}, v{8+r} row_newbcast:{c} row_mask:0xf bank_mask:0xf")

        def vtile(j):
            a = 12 + (j & 1) * 4
            r = slot(32 + j)
            c = "0" if j == 0 else "v[20:23]"
            A(f"v_mfma_f32_16x16x32_bf16 v[20:23], v[{a}:{a+3}], v[{r}:{r+3}], {c}")
            consumed.add(32 + j)
            if j + 1 < 32: buildA(j + 1)

        def gml():
            self.spin_lds(GFLAG, 32, 39)
            A(f"ds_read_b64 v[36:37], v39 offset:{GML}")
            A("s_waitcnt lgkmcnt(0)")
            A("v_sub_f32 v35, s60, v36")
            A(f"v_mul_f32 v35, {LOG2E:#x}, v35")
            A("v_exp_f32 v35, v35")
            A("v_mul_f32 v35, v35, v37")

        tasks = [("kg", p, 4*p + 3) for p in range(8)] + [("sm", 0, 31)]
        for j in range(32):
            if j == self.gmlpos: tasks.append(("gml", 0, -1))
            tasks.append(("v", j, 32 + j))

        def run(t):
            kind, x, nd = t
            if kind == "kg": kgroup(x)
            elif kind == "sm":
                softmax(); buildA(0)
            elif kind == "gml": gml()
            else: vtile(x)

        for i in range(D): issue(i)
        A("s_mov_b32 s44, s20"); A("s_mov_b32 s45, s21")
        self.srd(48, 24, 4096 * 640 * 2)
        self.srd(52, 32, 1728 * 640 * 2)
        self.srd(56, 38, WS_SIZE)
        A("s_barrier")
        self.masks(8, 26, 27)
        A("v_mov_b32 v39, 0")
        for p, val in ((8, 0x22222222), (10, 0x44444444), (12, 0x88888888)):
            A(f"s_mov_b32 s{p}, {val:#x}"); A(f"s_mov_b32 s{p+1}, {val:#x}")
        A("v_lshrrev_b32 v26, 4, v0")
        A("v_and_b32 v27, 15, v0")
        A("s_mul_i32 s14, s5, 160")
        A("v_lshlrev_b32 v28, 4, v27")
        A("v_add_u32 v28, s14, v28")
        A(f"v_mov_b32 v29, {OOB:#x}")
        A("v_cmp_gt_u32 vcc, 10, v27")
        A("v_cndmask_b32 v28, v29, v28, vcc")
        A("s_lshl_b32 s14, s4, 7"); A("s_lshl_b32 s15, s3, 4"); A("s_add_u32 s14, s14, s15")
        A("s_mul_i32 s14, s14, 1280")
        A("v_mul_u32_u24 v29, 5120, v26")
        A("v_add3_u32 v2, v28, v29, s14")
        A("s_lshl_b32 s14, s4, 6"); A("s_lshl_b32 s15, s3, 3"); A("s_add_u32 s14, s14, s15")
        A("s_mul_i32 s14, s14, 1280")
        A("v_mul_u32_u24 v29, 2560, v26")
        A("v_add3_u32 v3, v28, v29, s14")
        A("v_and_b32 v29, 1, v26")
        A("v_lshlrev_b32 v29, 4, v29")
        A("v_lshlrev_b32 v33, 5, v27")
        A("s_lshl_b32 s14, s3, 9")
        A("v_add3_u32 v33, v33, v29, s14")
        A("v_and_b32 v29, 7, v27")
        A("v_lshlrev_b32 v29, 10, v29")
        A("v_lshrrev_b32 v30, 3, v27")
        A("v_lshlrev_b32 v30, 4, v30")
        A("v_lshlrev_b32 v31, 5, v26")
        A("v_add3_u32 v34, v29, v30, v31")
        A("s_lshl_b32 s14, s4, 13"); A("s_lshl_b32 s15, s3, 7"); A("s_add_u32 s14, s14, s15")
        A(f"s_add_u32 s14, s14, {H1O:#x}")
        A("v_add_u32 v34, s14, v34")
        A("s_lshl_b32 s14, s3, 4")
        A("v_lshlrev_b32 v38, 2, v26")
        A("v_add_u32 v38, s14, v38")

        ti = 0
        qdone = False
        for i in range(D, NL):
            kind = loads[i][0]
            Dh = D if kind != "W" else self.DW
            while i >= 32 and (i - 32) not in consumed:
                t = tasks[ti]; need(t[2]); run(t); ti += 1
            if st["issued"] - (st["arrived"] + 1) >= Dh:
                need(i - Dh)
            issue(i)
            if i == N1 - 1:
                self.stamp(1)
                self.spin_lds(QFLAG, 32, 39)
                A("v_and_b32 v32, 15, v0")
                A("v_lshlrev_b32 v32, 4, v32")
                A(f"ds_read_b128 v[4:7], v32 offset:{QL}")
                A("s_waitcnt lgkmcnt(0)")
                self.stamp(2)
                qdone = True
            if qdone:
                budget = 2
                while ti < len(tasks) and budget > 0 and tasks[ti][2] <= st["arrived"]:
                    t = tasks[ti]; run(t); ti += 1
                    budget -= 2 if t[0] in ("kg", "sm") else 1
        while ti < len(tasks):
            t = tasks[ti]; need(t[2]); run(t); ti += 1
        for r in range(4):
            A(f"v_mul_f32 v{20+r}, v{20+r}, v35")
        A(f"ds_write_b128 v33, v[20:23] offset:{OL}")
        A("s_waitcnt lgkmcnt(0)")
        self.stamp(4)
        A("s_barrier")
        self.stamp(5)
        A("buffer_load_dwordx4 v[24:27], v34, s[56:59], 0 offen sc1")
        A(f"ds_read_b32 v36, v38 offset:{HL}")
        A("s_mov_b32 s14, 0x01000100"); A("s_mov_b32 s15, 0x03020302")
        A("s_waitcnt lgkmcnt(0)")
        A("v_perm_b32 v37, v36, v36, s14")
        A("v_perm_b32 v36, v36, v36, s15")
        for r in range(4): A(f"v_and_b32 v{12+r}, v37, v{8+r}")
        for r in range(4): A(f"v_and_b32 v{16+r}, v36, v{8+r}")
        w = lambda j: slot(64 + j)
        A("s_waitcnt vmcnt(5)")
        A(f"v_mfma_f32_16x16x32_bf16 v[20:23], v[12:15], v[{w(0)}:{w(0)+3}], 0")
        A(f"v_mfma_f32_16x16x32_bf16 v[20:23], v[16:19], v[{w(1)}:{w(1)+3}], v[20:23]")
        l0, l1, l2 = self.L("h1"), self.L("h1d"), self.L("h1c")
        A(f"s_mov_b32 s14, {SPIN_GLB}")
        A(f"s_branch {l2}")
        A(f"{l0}:")
        A("buffer_load_dwordx4 v[24:27], v34, s[56:59], 0 offen sc1")
        A(f"{l2}:")
        A("s_waitcnt vmcnt(0)")
        A("v_min_u32 v28, v25, v27")
        A("v_cmp_eq_u32 vcc, s69, v28")
        A("s_nop 1")
        A("s_cmp_eq_u64 vcc, -1")
        A(f"s_cbranch_scc1 {l1}")
        A("s_sub_u32 s14, s14, 1")
        A("s_cmp_lg_u32 s14, 0")
        A(f"s_cbranch_scc1 {l0}")
        A(f"{l1}:")
        self.stamp(6)
        for stp in ("quad_perm:[1,0,3,2]", "quad_perm:[2,3,0,1]", "row_half_mirror"):
            A(f"v_add_f32_dpp v24, v24, v24 {stp} row_mask:0xf bank_mask:0xf")
            A(f"v_add_f32_dpp v26, v26, v26 {stp} row_mask:0xf bank_mask:0xf")
        A("v_cvt_pk_bf16_f32 v24, v24, v24")
        A("v_cvt_pk_bf16_f32 v26, v26, v26")
        for t in range(4):
            src = 24 if (t & 1) == 0 else 26
            c = 0 if t < 2 else 8
            a = 12 + (t & 1) * 4
            for r in range(4):
                A(f"v_and_b32_dpp v{a+r}, v{src}, v{8+r} row_newbcast:{c} row_mask:0xf bank_mask:0xf")
            A(f"v_mfma_f32_16x16x32_bf16 v[20:23], v[{a}:{a+3}], v[{w(2+t)}:{w(2+t)+3}], v[20:23]")
        A(f"ds_write_b128 v33, v[20:23] offset:{YL}")
        A("s_waitcnt lgkmcnt(0)")
        A("s_barrier")
        self.stamp(7)
        if self.stamps:
            A("s_cmp_lg_u32 s3, 0")
            A("s_cbranch_scc1 L_end")
            self.write_stamps(2, 8)
        A("s_endpgm")

    def aux_common(self):
        A = self.A
        A("s_setprio 3")
        A("s_waitcnt lgkmcnt(0)")
        self.srd(40, 16, 1280)
        A("v_lshlrev_b32 v9, 2, v0")
        for i in range(5):
            A(f"buffer_load_dword v{4+i}, v9, s[40:43], 0 offen offset:{i*256}")
        self.srd(56, 38, WS_SIZE)
        self.srd(60, 36, 256)

    def aux0(self):
        A = self.A
        A("v_mov_b32 v30, 0"); A("v_mov_b32 v31, 0"); A("v_mov_b32 v32, 0"); A("v_mov_b32 v33, 0")
        A("v_lshlrev_b32 v34, 2, v0")
        A("s_mov_b64 exec, 0xffff")
        A(f"ds_write_b32 v34, v30 offset:{QFLAG}")
        A("s_mov_b64 exec, -1")
        A("s_lshl_b32 s7, s6, 10")
        A("v_lshlrev_b32 v35, 4, v0")
        A("v_add_u32 v35, s7, v35")
        A(f"s_mov_b32 s8, {H0F:#x}"); A(f"s_mov_b32 s9, {H1O:#x}")
        A("buffer_store_dwordx4 v[30:33], v35, s[56:59], 0 offen sc1")
        A("buffer_store_dwordx4 v[30:33], v35, s[56:59], s8 offen sc1")
        A("buffer_store_dwordx4 v[30:33], v35, s[56:59], s9 offen sc1")
        A("s_lshl_b32 s7, s6, 4"); A(f"s_add_u32 s7, s7, {H1ML:#x}")
        A(f"v_mov_b32 v36, {OOB:#x}")
        A("v_mov_b32 v37, s7")
        A("v_cmp_eq_u32 vcc, 0, v0")
        A("v_cndmask_b32 v36, v36, v37, vcc")
        A("buffer_store_dwordx4 v[30:33], v36, s[56:59], 0 offen sc1")
        A("s_mul_i32 s7, s5, 20"); A("s_lshl_b32 s7, s7, 10"); A("s_lshl_b32 s10, s4, 5"); A("s_add_u32 s7, s7, s10")
        A(f"s_add_u32 s7, s7, {H2:#x}")
        A("v_lshrrev_b32 v37, 1, v0"); A("v_lshlrev_b32 v37, 10, v37")
        A("v_and_b32 v38, 1, v0"); A("v_lshlrev_b32 v38, 4, v38")
        A("v_add3_u32 v37, v37, v38, s7")
        A(f"v_mov_b32 v38, {OOB:#x}")
        A("v_cmp_gt_u32 vcc, 40, v0")
        A("v_cndmask_b32 v37, v38, v37, vcc")
        A("buffer_store_dwordx4 v[30:33], v37, s[56:59], 0 offen sc1")
        A("s_waitcnt lgkmcnt(0)")
        A("s_barrier")
        self.srd(44, 22, 640 * 4096 * 2)
        A("v_lshrrev_b32 v38, 4, v0")
        A("v_mul_u32_u24 v39, 20, v38")
        A("s_mul_i32 s7, s5, 80")
        A("v_add_u32 v39, s7, v39")
        A("v_lshlrev_b32 v39, 13, v39")
        A("v_and_b32 v38, 15, v0"); A("v_lshlrev_b32 v38, 4, v38")
        A("s_lshl_b32 s7, s4, 8")
        A("v_add3_u32 v39, v39, v38, s7")
        A("s_mov_b32 s7, 0")
        for t in range(20):
            A(f"buffer_load_dwordx4 v[{40+4*t}:{43+4*t}], v39, s[44:47], s7 offen nt")
            if t < 19: A("s_add_u32 s7, s7, 0x2000")
        A("s_waitcnt vmcnt(25)")
        self.stamp(1)
        self.layernorm(XN0)
        A("s_waitcnt vmcnt(20)")
        self.stamp(2)
        A("v_mov_b32 v10, s6"); A("v_mov_b32 v11, 1")
        A("s_mov_b64 exec, 1")
        A("buffer_store_byte v11, v10, s[60:63], 0 offen sc1")
        A("s_mov_b64 exec, -1")
        A("v_lshrrev_b32 v20, 4, v0")
        A("v_mul_u32_u24 v20, 40, v20")
        A("s_mul_i32 s7, s5, 160")
        A("v_add_u32 v20, s7, v20")
        A("s_waitcnt lgkmcnt(0)")
        for i in range(5):
            A(f"ds_read_b64 v[{10+2*i}:{11+2*i}], v20 offset:{XN0+8*i}")
        self.masks(4, 21, 22)
        A("s_mov_b32 s8, 0x01000100"); A("s_mov_b32 s9, 0x03020302")
        A("s_waitcnt lgkmcnt(0)")
        for t in range(20):
            a = 24 + (t & 1) * 4
            A(f"v_perm_b32 v21, v{10 + t//2}, v{10 + t//2}, s{8 + (t & 1)}")
            for r in range(4): A(f"v_and_b32 v{a+r}, v21, v{4+r}")
            A(f"s_waitcnt vmcnt({19 - t + 1})")
            c = "0" if t == 0 else "v[120:123]"
            A(f"v_mfma_f32_16x16x32_bf16 v[120:123], v[{a}:{a+3}], v[{40+4*t}:{43+4*t}], {c}")
        A("s_mov_b32 s8, -1"); A("s_mov_b32 s9, 0")
        A("v_and_b32 v20, 15, v0"); A("v_lshlrev_b32 v20, 6, v20")
        A("v_bfe_u32 v21, v0, 4, 1"); A("v_lshlrev_b32 v21, 5, v21")
        A("v_lshrrev_b32 v22, 5, v0"); A("v_lshlrev_b32 v22, 4, v22")
        A("v_add3_u32 v20, v20, v21, v22")
        A("s_lshl_b32 s7, s6, 10")
        A("v_add_u32 v20, s7, v20")
        A("v_cndmask_b32_e64 v24, v122, v120, s[8:9]")
        A("v_mov_b32 v25, s69")
        A("v_cndmask_b32_e64 v26, v123, v121, s[8:9]")
        A("v_mov_b32 v27, s69")
        A("buffer_store_dwordx4 v[24:27], v20, s[56:59], 0 offen sc1")
        self.stamp(3)
        A("s_lshl_b32 s7, s4, 3")
        A("v_mov_b32 v20, s7")
        l0, l1 = self.L("gf"), self.L("gfd")
        A(f"s_mov_b32 s14, {SPIN_GLB}")
        A(f"{l0}:")
        A("buffer_load_dwordx2 v[22:23], v20, s[60:63], 0 offen sc1")
        A("s_waitcnt vmcnt(0)")
        A("v_and_b32 v22, v22, v23")
        A("v_cmp_eq_u32 vcc, 0x01010101, v22")
        A("s_nop 1")
        A("s_cmp_eq_u64 vcc, -1")
        A(f"s_cbranch_scc1 {l1}")
        A("s_sub_u32 s14, s14, 1"); A("s_cmp_lg_u32 s14, 0"); A(f"s_cbranch_scc1 {l0}")
        A(f"{l1}:")
        self.stamp(4)
        A("s_lshl_b32 s7, s4, 13")
        A("v_lshlrev_b32 v20, 4, v0")
        A("v_add_u32 v20, s7, v20")
        A("v_add_u32 v21, 0x1000, v20")
        def issue():
            for sp in range(8):
                A(f"buffer_load_dwordx4 v[{40+4*sp}:{43+4*sp}], v{20 + (sp >> 2)}, s[56:59], 0 offen offset:{(sp & 3)*1024} sc1")
        self.poll_loop(issue, [41 + 2*i for i in range(16)], 22)
        for sp in range(1, 8):
            A(f"v_add_f32 v40, v40, v{40+4*sp}")
            A(f"v_add_f32 v42, v42, v{42+4*sp}")
        A("v_cvt_pk_bf16_f32 v40, v40, v42")
        A("v_lshlrev_b32 v21, 2, v0")
        A(f"ds_write_b32 v21, v40 offset:{QL}")
        A("v_mov_b32 v22, 1"); A("v_mov_b32 v23, 0")
        A("s_waitcnt lgkmcnt(0)")
        A("s_mov_b64 exec, 1")
        A(f"ds_write_b32 v23, v22 offset:{QFLAG}")
        A("s_mov_b64 exec, -1")
        self.stamp(5)
        A("v_and_b32 v20, 7, v0")
        A("v_lshlrev_b32 v21, 2, v20")
        A("v_lshlrev_b32 v20, 3, v20")
        l0, l1 = self.L("ml"), self.L("mld")
        A(f"s_mov_b32 s14, {SPIN_LDS*4}")
        A(f"{l0}:")
        A(f"ds_read_b32 v24, v21 offset:{MLF}")
        A(f"ds_read_b64 v[26:27], v20 offset:{ML}")
        A("s_waitcnt lgkmcnt(0)")
        A("v_cmp_ne_u32 vcc, 0, v24")
        A("s_nop 1")
        A("s_cmp_eq_u64 vcc, -1")
        A(f"s_cbranch_scc1 {l1}")
        A("s_sub_u32 s14, s14, 1"); A("s_cmp_lg_u32 s14, 0"); A(f"s_cbranch_scc1 {l0}")
        A(f"{l1}:")
        self.stamp(6)
        A("v_mov_b32 v28, v26")
        self.red8("v_max_f32", 28)
        A("v_sub_f32 v26, v26, v28")
        A(f"v_mul_f32 v26, {LOG2E:#x}, v26")
        A("v_exp_f32 v26, v26")
        A("v_mul_f32 v30, v26, v27")
        self.red8("v_add_f32", 30)
        A("v_mov_b32 v29, s69"); A("v_mov_b32 v31, s69")
        A("buffer_store_dwordx4 v[28:31], v36, s[56:59], 0 offen sc1")
        A("s_lshl_b32 s7, s4, 7"); A(f"s_add_u32 s7, s7, {H1ML:#x}")
        A("v_lshlrev_b32 v21, 1, v20")
        A("v_add_u32 v21, s7, v21")
        def issue2():
            A("buffer_load_dwordx4 v[24:27], v21, s[56:59], 0 offen sc1")
        self.poll_loop(issue2, [25, 27], 22)
        A("v_mov_b32 v28, v24")
        self.red8("v_max_f32", 28)
        A("v_sub_f32 v24, v24, v28")
        A(f"v_mul_f32 v24, {LOG2E:#x}, v24")
        A("v_exp_f32 v24, v24")
        A("v_mul_f32 v29, v24, v26")
        self.red8("v_add_f32", 29)
        A("v_rcp_f32 v30, v29")
        A("v_fma_f32 v31, -v29, v30, 1.0")
        A("v_fma_f32 v29, v31, v30, v30")
        A("v_mov_b32 v22, 1")
        A("s_mov_b64 exec, 1")
        A(f"ds_write_b64 v23, v[28:29] offset:{GML}")
        A(f"ds_write_b32 v23, v22 offset:{GFLAG}")
        A("s_mov_b64 exec, -1")
        self.stamp(7)
        A("v_lshlrev_b32 v20, 3, v0")
        A("v_mov_b32 v41, s69"); A("v_mov_b32 v43, s69")
        A("s_waitcnt lgkmcnt(0)")
        A("s_barrier")
        for wv in range(8):
            A(f"ds_read_b64 v[{44+2*wv}:{45+2*wv}], v20 offset:{OL + wv*512}")
        self._sum8(44, 40, 42)
        A(f"s_mov_b32 s9, {H1O:#x}")
        A("buffer_store_dwordx4 v[40:43], v35, s[56:59], s9 offen sc1")
        self.stamp(8)
        A("s_barrier")
        for wv in range(8):
            A(f"ds_read_b64 v[{44+2*wv}:{45+2*wv}], v20 offset:{YL + wv*512}")
        A("v_mov_b32 v65, s69"); A("v_mov_b32 v67, s69")
        self._sum8(44, 64, 66)
        A("buffer_store_dwordx4 v[64:67], v37, s[56:59], 0 offen sc1")
        self.stamp(9)
        if self.stamps:
            A("s_getreg_b32 s14, hwreg(HW_REG_XCC_ID)")
            A("s_getreg_b32 s15, hwreg(HW_REG_HW_ID)")
            A("s_waitcnt lgkmcnt(0)")
            A("s_mov_b64 exec, 1")
            A("s_lshl_b32 s68, s2, 8"); A(f"s_add_u32 s68, s68, {STAMP}")
            A("v_mov_b32 v4, s68"); A("v_mov_b32 v8, s14"); A("v_mov_b32 v9, 0"); A("v_mov_b32 v10, s15"); A("v_mov_b32 v11, 0")
            A("buffer_store_dwordx4 v[8:11], v4, s[56:59], 0 offen")
            A("s_waitcnt vmcnt(0)")
            A("s_mov_b64 exec, -1")
            for k in range(1, 10):
                A(f"s_mov_b32 s{70+2*(k-1)}, s{70+2*k}"); A(f"s_mov_b32 s{71+2*(k-1)}, s{71+2*k}")
            self.write_stamps(10, 9)
        A("s_endpgm")

    def _sum8(self, base, d0, d1):
        A = self.A
        A("s_waitcnt lgkmcnt(0)")
        for (x, y) in ((0, 1), (2, 3), (4, 5), (6, 7)):
            A(f"v_add_f32 v{base+2*x}, v{base+2*x}, v{base+2*y}")
            A(f"v_add_f32 v{base+2*x+1}, v{base+2*x+1}, v{base+2*y+1}")
        for (x, y) in ((0, 2), (4, 6)):
            A(f"v_add_f32 v{base+2*x}, v{base+2*x}, v{base+2*y}")
            A(f"v_add_f32 v{base+2*x+1}, v{base+2*x+1}, v{base+2*y+1}")
        A(f"v_add_f32 v{d0}, v{base}, v{base+8}")
        A(f"v_add_f32 v{d1}, v{base+1}, v{base+9}")

    def aux1(self):
        A = self.A
        A("s_barrier")
        self.srd(44, 28, 640 * 1728 * 2)
        self.srd(48, 30, 640 * 1728 * 2)
        A("v_lshrrev_b32 v38, 3, v0")
        A("v_mul_u32_u24 v39, 10, v38")
        A("s_mul_i32 s7, s5, 80")
        A("v_add_u32 v39, s7, v39")
        A("v_mul_u32_u24 v39, 3456, v39")
        A("v_and_b32 v38, 7, v0"); A("v_lshlrev_b32 v38, 4, v38")
        A("s_lshl_b32 s7, s4, 7")
        A("s_cmp_ge_u32 s4, 27")
        A(f"s_cselect_b32 s7, {OOB:#x}, s7")
        A("v_add3_u32 v39, v39, v38, s7")
        A("s_mov_b32 s7, 0")
        for t in range(10):
            A(f"buffer_load_dwordx4 v[{40+8*t}:{43+8*t}], v39, s[44:47], s7 offen nt")
            A(f"buffer_load_dwordx4 v[{44+8*t}:{47+8*t}], v39, s[48:51], s7 offen nt")
            if t < 9: A("s_add_u32 s7, s7, 3456")
        A("s_waitcnt vmcnt(20)")
        self.layernorm(XN1)
        A("v_lshrrev_b32 v20, 3, v0")
        A("v_mul_u32_u24 v20, 20, v20")
        A("s_mul_i32 s7, s5, 160")
        A("v_add_u32 v20, s7, v20")
        A("s_waitcnt lgkmcnt(0)")
        A(f"v_add_u32 v20, {XN1}, v20")
        A("ds_read2_b32 v[10:11], v20 offset0:0 offset1:1")
        A("ds_read2_b32 v[12:13], v20 offset0:2 offset1:3")
        A("ds_read_b32 v14, v20 offset:16")
        self.masks(4, 21, 22)
        A("s_mov_b32 s8, 0x01000100"); A("s_mov_b32 s9, 0x03020302")
        A("s_waitcnt lgkmcnt(0)")
        for t in range(10):
            a = 24 + (t & 1) * 4
            A(f"v_perm_b32 v21, v{10 + t//2}, v{10 + t//2}, s{8 + (t & 1)}")
            for r in range(4): A(f"v_and_b32 v{a+r}, v21, v{4+r}")
            A(f"s_waitcnt vmcnt({18 - 2*t})")
            c1 = "0" if t == 0 else "v[120:123]"
            c3 = "0" if t == 0 else "v[124:127]"
            A(f"v_mfma_f32_16x16x32_bf16 v[120:123], v[{a}:{a+3}], v[{40+8*t}:{43+8*t}], {c1}")
            A(f"v_mfma_f32_16x16x32_bf16 v[124:127], v[{a}:{a+3}], v[{44+8*t}:{47+8*t}], {c3}")
        A("v_lshrrev_b32 v20, 5, v0"); A("v_lshlrev_b32 v20, 8, v20")
        A("v_and_b32 v21, 7, v0"); A("v_lshlrev_b32 v21, 5, v21")
        A("v_bfe_u32 v22, v0, 4, 1"); A("v_lshlrev_b32 v22, 4, v22")
        A("v_add3_u32 v20, v20, v21, v22")
        A("s_mov_b32 exec_lo, 0x00ff00ff"); A("s_mov_b32 exec_hi, 0xff00ff00")
        A(f"ds_write_b128 v20, v[120:123] offset:{GU}")
        A(f"ds_write_b128 v20, v[124:127] offset:{GU+512}")
        A("s_mov_b64 exec, -1")
        A("v_lshrrev_b32 v20, 5, v0"); A("v_lshlrev_b32 v20, 9, v20")
        A("v_and_b32 v21, 31, v0"); A("v_lshlrev_b32 v21, 3, v21")
        A("v_add_u32 v20, v20, v21")
        A("s_waitcnt lgkmcnt(0)")
        A(f"ds_read_b64 v[24:25], v20 offset:{GU}")
        A(f"ds_read_b64 v[26:27], v20 offset:{GU+256}")
        A("s_waitcnt lgkmcnt(0)")
        A("v_add_f32 v28, v24, v26"); A("v_mov_b32 v29, s69")
        A("v_add_f32 v30, v25, v27"); A("v_mov_b32 v31, s69")
        A("v_mov_b32 v23, 0")
        self.spin_lds(QFLAG, 22, 23)
        A("s_lshl_b32 s7, s6, 10"); A(f"s_add_u32 s7, s7, {H0F:#x}")
        A("v_lshlrev_b32 v20, 4, v0")
        A("v_add_u32 v20, s7, v20")
        A("buffer_store_dwordx4 v[28:31], v20, s[56:59], 0 offen sc1")
        A("s_lshl_b32 s7, s4, 13"); A(f"s_add_u32 s7, s7, {H0F:#x}")
        A("v_lshlrev_b32 v20, 4, v0")
        A("v_add_u32 v20, s7, v20")
        A("v_add_u32 v21, 0x1000, v20")
        def issue():
            for sp in range(8):
                A(f"buffer_load_dwordx4 v[{40+4*sp}:{43+4*sp}], v{20 + (sp >> 2)}, s[56:59], 0 offen offset:{(sp & 3)*1024} sc1")
        self.poll_loop(issue, [41 + 2*i for i in range(16)], 22)
        for sp in range(1, 8):
            A(f"v_add_f32 v40, v40, v{40+4*sp}")
            A(f"v_add_f32 v42, v42, v{42+4*sp}")
        A("v_cvt_pk_bf16_f32 v40, v40, v42")
        A("v_lshlrev_b32 v44, 16, v40")
        A("v_and_b32 v45, 0xffff0000, v40")
        A("v_mov_b32 v46, v44"); A("v_mov_b32 v47, v45")
        A("v_permlane32_swap_b32 v46, v48")
        A("v_permlane32_swap_b32 v47, v49")
        for g, u in ((44, 48), (45, 49)):
            A(f"v_mul_f32 v50, {LOG2E ^ 0x80000000:#x}, v{g}")
            A("v_exp_f32 v50, v50")
            A("v_add_f32 v50, 1.0, v50")
            A("v_rcp_f32 v51, v50")
            A(f"v_mul_f32 v{g}, v{g}, v51")
        A("v_cvt_pk_bf16_f32 v50, v44, v45")
        A("v_lshlrev_b32 v44, 16, v50")
        A("v_and_b32 v45, 0xffff0000, v50")
        A("v_mul_f32 v44, v44, v48")
        A("v_mul_f32 v45, v45, v49")
        A("v_cvt_pk_bf16_f32 v50, v44, v45")
        A("v_lshlrev_b32 v21, 2, v0")
        A("s_mov_b32 exec_lo, -1"); A("s_mov_b32 exec_hi, 0")
        A(f"ds_write_b32 v21, v50 offset:{HL}")
        A("s_mov_b64 exec, -1")
        self.stamp(1)
        lskip = self.L("nored")
        A("s_cmp_ge_u32 s2, 160")
        A(f"s_cbranch_scc1 {lskip}")
        A("v_lshlrev_b32 v20, 2, v0")
        l0, l1 = self.L("af"), self.L("afd")
        A(f"s_mov_b32 s14, {SPIN_GLB}")
        A(f"{l0}:")
        A("buffer_load_dword v22, v20, s[60:63], 0 offen sc1")
        A("s_waitcnt vmcnt(0)")
        A("v_cmp_eq_u32 vcc, 0x01010101, v22")
        A("s_nop 1")
        A("s_cmp_eq_u64 vcc, -1")
        A(f"s_cbranch_scc1 {l1}")
        A("s_sub_u32 s14, s14, 1"); A("s_cmp_lg_u32 s14, 0"); A(f"s_cbranch_scc1 {l0}")
        A(f"{l1}:")
        A("s_lshl_b32 s7, s2, 3")
        A("v_mov_b32 v20, s7")
        A("buffer_load_dwordx2 v[30:31], v20, s[40:43], 0 offen")
        self.srd(64, 34, 1280)
        A(f"{lskip}:")
        self.stamp(2)
        A("s_waitcnt vmcnt(0) lgkmcnt(0)")
        A("s_barrier")
        A("s_barrier")
        lend = self.L("a1end")
        A("s_cmp_ge_u32 s2, 160")
        A(f"s_cbranch_scc1 {lend}")
        A("s_lshl_b32 s7, s2, 10"); A(f"s_add_u32 s7, s7, {H2:#x}")
        A("v_and_b32 v20, 31, v0"); A("v_lshlrev_b32 v20, 5, v20")
        A("v_lshrrev_b32 v21, 5, v0"); A("v_lshlrev_b32 v21, 4, v21")
        A("v_add3_u32 v20, v20, v21, s7")
        def issue2():
            A("buffer_load_dwordx4 v[24:27], v20, s[56:59], 0 offen sc1")
        self.poll_loop(issue2, [25, 27], 22)
        for n in (8, 4, 2, 1):
            A(f"v_add_f32_dpp v24, v24, v24 row_ror:{n} row_mask:0xf bank_mask:0xf")
            A(f"v_add_f32_dpp v26, v26, v26 row_ror:{n} row_mask:0xf bank_mask:0xf")
        A("v_add_f32_dpp v24, v24, v24 row_bcast:15 row_mask:0xa bank_mask:0xf")
        A("v_add_f32_dpp v26, v26, v26 row_bcast:15 row_mask:0xa bank_mask:0xf")
        A("v_lshlrev_b32 v32, 16, v30"); A("v_and_b32 v33, 0xffff0000, v30")
        A("v_lshlrev_b32 v34, 16, v31"); A("v_and_b32 v35, 0xffff0000, v31")
        A("v_readlane_b32 s8, v24, 31"); A("v_readlane_b32 s9, v26, 31")
        A("v_readlane_b32 s10, v24, 63"); A("v_readlane_b32 s11, v26, 63")
        A("v_add_f32 v32, s8, v32"); A("v_add_f32 v33, s9, v33")
        A("v_add_f32 v34, s10, v34"); A("v_add_f32 v35, s11, v35")
        A("v_cvt_pk_bf16_f32 v32, v32, v33")
        A("v_cvt_pk_bf16_f32 v33, v34, v35")
        A("s_lshl_b32 s7, s2, 3")
        A("v_mov_b32 v20, s7")
        A("s_mov_b64 exec, 1")
        A("buffer_store_dwordx2 v[32:33], v20, s[64:67], 0 offen")
        A("s_mov_b64 exec, -1")
        A(f"{lend}:")
        self.stamp(3)
        if self.stamps:
            for k in range(1, 4):
                A(f"s_waitcnt lgkmcnt(0)")
                A(f"s_mov_b32 s{70+2*(k-1)}, s{70+2*k}"); A(f"s_mov_b32 s{71+2*(k-1)}, s{71+2*k}")
            self.write_stamps(19, 3)
        A("s_endpgm")

    def build(self):
        A = self.A
        A(f"; @launch grid=(256,1,1) block=(640,1,1) lds={LDS_SIZE}")
        A('.amdgcn_target "amdgcn-amd-amdhsa--gfx950"')
        A(".text"); A(f".globl {KN}"); A(".p2align 8"); A(f".type {KN},@function"); A(f"{KN}:")
        self.prologue()
        self.streaming()
        A("L_aux:")
        self.aux_common()
        A("s_cmp_eq_u32 s3, 9")
        A("s_cbranch_scc1 L_aux1")
        self.aux0()
        A("L_aux1:")
        self.aux1()
        A("L_end:")
        A("s_endpgm")
        nv = 168
        A('.section .rodata,"a"'); A(".p2align 6"); A(f".amdhsa_kernel {KN}")
        A(f"  .amdhsa_next_free_vgpr {nv}"); A("  .amdhsa_next_free_sgpr 102"); A(f"  .amdhsa_accum_offset {nv}")
        A("  .amdhsa_group_segment_fixed_size 0"); A("  .amdhsa_kernarg_size 96"); A("  .amdhsa_user_sgpr_count 2")
        A("  .amdhsa_user_sgpr_kernarg_segment_ptr 1"); A("  .amdhsa_system_sgpr_workgroup_id_x 1"); A(".end_amdhsa_kernel")
        A.lines = [l for l in A.lines if l is not None]
        return HDR + A.finish()


if __name__ == "__main__":
    ap = argparse.ArgumentParser()
    ap.add_argument("-o", default=f"cdna_kernels/{NAME}.s")
    ap.add_argument("--D", type=int, default=4)
    ap.add_argument("--N1", type=int, default=24)
    ap.add_argument("--DW", type=int, default=10)
    ap.add_argument("--gmlpos", type=int, default=24)
    ap.add_argument("--stamps", action="store_true")
    a = ap.parse_args()
    g = G(D=a.D, N1=a.N1, DW=a.DW, stamps=a.stamps, gmlpos=a.gmlpos)
    open(a.o, "w").write(g.build())
    print("wrote", a.o)
```

```python
import sys, os, argparse
sys.path.insert(0, os.path.dirname(os.path.abspath(__file__)))
from asmlib import Asm

NAME = "parallel_sum__gqa_block_cached__glu_gated_swiglu__decode"
KN = NAME + "_kernel"
HDR = open(f"cdna_kernels/{NAME}.s.ref").read().split("; Override launch")[0]

H0Q, H0F, H1O, H1ML, H2, STAMP = 0x0, 0x40000, 0x80000, 0xC0000, 0xD0000, 0x100000
WS_SIZE = 0x200000
TAG = 0x5AC3A5C3
XN0, XN1, QL, HL = 0x000, 0x500, 0xA00, 0xB00
QFLAG, GFLAG, GML, MLF, ML = 0xB80, 0xB84, 0xB88, 0xBA0, 0xBC0
OL, YL, GU = 0xC00, 0x1C00, 0x2C00
LDS_SIZE = 0x3000
LOG2E = 0x3FB8AA3B
SCALE = 0x3DB504F3
OOB = 0x40000000
SPIN_LDS = 1 << 16
SPIN_GLB = 1 << 12
RING = 40


class G:
    def __init__(self, D=4, N1=24, DW=10, stamps=False, gmlpos=24, prefetch=False, mapping="xcd"):
        self.mapping = mapping
        self.A = Asm()
        self.D, self.N1, self.DW, self.stamps, self.gmlpos, self.prefetch = D, N1, DW, stamps, gmlpos, prefetch
        self.lbl = 0

    def L(self, base):
        self.lbl += 1
        return f"L_{base}_{self.lbl}"

    def stamp(self, k):
        if self.stamps:
            self.A(f"s_memrealtime s[{70+2*k}:{71+2*k}]")

    def write_stamps(self, first_slot, n, vt=4):
        if not self.stamps: return
        A = self.A
        A("s_waitcnt lgkmcnt(0)")
        A("s_mov_b64 exec, 1")
        A(f"s_lshl_b32 s68, s2, 8")
        A(f"s_add_u32 s68, s68, {STAMP + first_slot*8}")
        A(f"v_mov_b32 v{vt}, s68")
        for k in range(n):
            A(f"v_mov_b32 v{vt+2}, s{70+2*k}")
            A(f"v_mov_b32 v{vt+3}, s{71+2*k}")
            A(f"buffer_store_dwordx2 v[{vt+2}:{vt+3}], v{vt}, s[56:59], 0 offen offset:{k*8}")
            A("s_waitcnt vmcnt(0)")
        A("s_mov_b64 exec, -1")

    def srd(self, base, lo, size):
        A = self.A
        A(f"s_mov_b32 s{base}, s{lo}"); A(f"s_mov_b32 s{base+1}, s{lo+1}")
        A(f"s_mov_b32 s{base+2}, {size:#x}"); A(f"s_mov_b32 s{base+3}, 0x20000")

    def spin_lds(self, off, vtmp, vzero, scnt="s14", stmp="s15"):
        A = self.A
        l0, l1 = self.L("sp"), self.L("spd")
        A(f"s_mov_b32 {scnt}, {SPIN_LDS}")
        A(f"{l0}:")
        A(f"ds_read_b32 v{vtmp}, v{vzero} offset:{off}")
        A("s_waitcnt lgkmcnt(0)")
        A(f"v_readfirstlane_b32 {stmp}, v{vtmp}")
        A("s_nop 0")
        A(f"s_cmp_lg_u32 {stmp}, 0")
        A(f"s_cbranch_scc1 {l1}")
        A(f"s_sub_u32 {scnt}, {scnt}, 1")
        A(f"s_cmp_lg_u32 {scnt}, 0")
        A(f"s_cbranch_scc1 {l0}")
        A(f"{l1}:")

    def red16(self, op, v, full=True):
        A = self.A
        for n in (8, 4, 2, 1):
            A(f"{op}_dpp v{v}, v{v}, v{v} row_ror:{n} row_mask:0xf bank_mask:0xf")

    def red64_lane63(self, op, v):
        A = self.A
        self.red16(op, v)
        A(f"{op}_dpp v{v}, v{v}, v{v} row_bcast:15 row_mask:0xa bank_mask:0xf")
        A(f"{op}_dpp v{v}, v{v}, v{v} row_bcast:31 row_mask:0xc bank_mask:0xf")

    def red8(self, op, v):
        A = self.A
        A(f"{op}_dpp v{v}, v{v}, v{v} quad_perm:[1,0,3,2] row_mask:0xf bank_mask:0xf")
        A(f"{op}_dpp v{v}, v{v}, v{v} quad_perm:[2,3,0,1] row_mask:0xf bank_mask:0xf")
        A(f"{op}_dpp v{v}, v{v}, v{v} row_half_mirror row_mask:0xf bank_mask:0xf")

    def masks(self, m0, t0, t1):
        A = self.A
        A(f"v_and_b32 v{t0}, 1, v0")
        A(f"v_lshlrev_b32 v{t0}, 4, v{t0}")
        A(f"v_mov_b32 v{t1}, 0xffff")
        A(f"v_lshlrev_b32 v{t0}, v{t0}, v{t1}")
        A(f"v_bfe_u32 v{t1}, v0, 1, 2")
        A(f"v_mov_b32 v{m0}, 1")
        A(f"v_lshlrev_b32 v{t1}, v{t1}, v{m0}")
        for r in range(4):
            A(f"v_bfe_i32 v{m0+r}, v{t1}, {r}, 1")
        for r in range(4):
            A(f"v_and_b32 v{m0+r}, v{m0+r}, v{t0}")

    def layernorm(self, xn_off):
        A = self.A
        for i in range(5):
            A(f"v_lshlrev_b32 v{10+2*i}, 16, v{4+i}")
            A(f"v_and_b32 v{11+2*i}, 0xffff0000, v{4+i}")
        A("v_add_f32 v20, v10, v11")
        for i in range(2, 10):
            A(f"v_add_f32 v20, v20, v{10+i}")
        self.red64_lane63("v_add_f32", 20)
        A("v_readlane_b32 s14, v20, 63")
        A(f"v_mov_b32 v21, 0x3acccccd")
        A("v_mul_f32 v21, s14, v21")
        A("v_sub_f32 v22, v10, v21")
        A("v_mul_f32 v20, v22, v22")
        for i in range(1, 10):
            A(f"v_sub_f32 v22, v{10+i}, v21")
            A("v_fmac_f32 v20, v22, v22")
        self.red64_lane63("v_add_f32", 20)
        A("v_readlane_b32 s14, v20, 63")
        A(f"v_mov_b32 v22, 0x3acccccd")
        A("v_mul_f32 v22, s14, v22")
        A("v_cvt_pk_bf16_f32 v23, v21, v22")
        A("v_lshlrev_b32 v21, 16, v23")
        A("v_and_b32 v22, 0xffff0000, v23")
        A("v_add_f32 v22, 0x3727c5ac, v22")
        A("v_cvt_pk_bf16_f32 v22, v22, v22")
        A("v_and_b32 v22, 0xffff0000, v22")
        A("v_sqrt_f32 v22, v22")
        A("v_cvt_pk_bf16_f32 v22, v22, v22")
        A("v_and_b32 v22, 0xffff0000, v22")
        A("v_rcp_f32 v23, v22")
        for i in range(5):
            a, b = 10 + 2*i, 11 + 2*i
            A(f"v_sub_f32 v{a}, v{a}, v21")
            A(f"v_sub_f32 v{b}, v{b}, v21")
            A(f"v_cvt_pk_bf16_f32 v24, v{a}, v{b}")
            A(f"v_lshlrev_b32 v{a}, 16, v24")
            A(f"v_and_b32 v{b}, 0xffff0000, v24")
            A(f"v_mul_f32 v25, v{a}, v23")
            A(f"v_mul_f32 v26, v{b}, v23")
            A(f"v_fma_f32 v27, -v25, v22, v{a}")
            A(f"v_fma_f32 v28, -v26, v22, v{b}")
            A(f"v_fmac_f32 v25, v27, v23")
            A(f"v_fmac_f32 v26, v28, v23")
            A(f"v_cvt_pk_bf16_f32 v{4+i}, v25, v26")
        A("v_lshlrev_b32 v9, 2, v0")
        A(f"ds_write2st64_b32 v9, v4, v5 offset0:{xn_off//256} offset1:{xn_off//256+1}")
        A(f"ds_write2st64_b32 v9, v6, v7 offset0:{xn_off//256+2} offset1:{xn_off//256+3}")
        A(f"ds_write_b32 v9, v8 offset:{xn_off+1024}")

    def poll_loop(self, issue, check_regs, tmp, sc="s14"):
        A = self.A
        l0, l1 = self.L("pl"), self.L("pld")
        A(f"s_mov_b32 {sc}, {SPIN_GLB}")
        A(f"{l0}:")
        issue()
        A("s_waitcnt vmcnt(0)")
        regs = list(check_regs)
        if len(regs) == 1:
            A(f"v_cmp_eq_u32 vcc, s69, v{regs[0]}")
        else:
            first = True
            cur = None
            i = 0
            if len(regs) == 2:
                A(f"v_min_u32 v{tmp}, v{regs[0]}, v{regs[1]}")
            else:
                A(f"v_min3_u32 v{tmp}, v{regs[0]}, v{regs[1]}, v{regs[2]}")
                i = 3
                while i < len(regs):
                    if i + 1 < len(regs):
                        A(f"v_min3_u32 v{tmp}, v{tmp}, v{regs[i]}, v{regs[i+1]}"); i += 2
                    else:
                        A(f"v_min_u32 v{tmp}, v{tmp}, v{regs[i]}"); i += 1
            A(f"v_cmp_eq_u32 vcc, s69, v{tmp}")
        A("s_nop 1")
        A("s_cmp_eq_u64 vcc, -1")
        A(f"s_cbranch_scc1 {l1}")
        A(f"s_sub_u32 {sc}, {sc}, 1")
        A(f"s_cmp_lg_u32 {sc}, 0")
        A(f"s_cbranch_scc1 {l0}")
        A(f"{l1}:")

    def prologue(self):
        A = self.A
        A("s_cmp_ge_u32 s2, 256")
        A("s_cbranch_scc1 L_end")
        if self.stamps:
            A("s_memrealtime s[70:71]")
        A("s_load_dwordx16 s[16:31], s[0:1], 0")
        A("s_load_dwordx8 s[32:39], s[0:1], 64")
        A("v_lshrrev_b32 v1, 6, v0")
        A("v_and_b32 v0, 63, v0")
        A("s_and_b32 s4, s2, 7")
        A("v_readfirstlane_b32 s3, v1")
        if self.mapping == "xcd":
            A("s_lshr_b32 s5, s2, 3")
            A("s_and_b32 s6, s5, 3")
            A("s_lshl_b32 s4, s4, 2")
            A("s_add_u32 s4, s4, s6")
            A("s_lshr_b32 s5, s5, 2")
        else:
            A("s_mov_b32 s5, s4")
            A("s_lshr_b32 s4, s2, 3")
        A("s_lshl_b32 s6, s4, 3")
        A("s_add_u32 s6, s6, s5")
        A(f"s_mov_b32 s69, {TAG:#x}")
        A("s_cmp_ge_u32 s3, 8")
        A("s_cbranch_scc1 L_aux")

    def streaming(self):
        A = self.A
        D, N1 = self.D, self.N1
        A("s_lshl_b32 s7, s4, 21")
        A("s_lshl_b32 s8, s5, 18")
        A("s_add_u32 s7, s7, s8")
        A("s_lshl_b32 s8, s3, 10")
        A("s_add_u32 s7, s7, s8")
        A("v_lshlrev_b32 v1, 4, v0")
        A("v_add_u32 v1, s7, v1")
        A("s_mov_b32 s42, 0x4000000"); A("s_mov_b32 s43, 0x20000")
        A("s_mov_b32 s46, 0x4000000"); A("s_mov_b32 s47, 0x20000")
        A("s_mov_b32 s7, 0")
        A("s_waitcnt lgkmcnt(0)")
        A("s_mov_b32 s40, s18"); A("s_mov_b32 s41, s19")
        loads = [("K", j) for j in range(32)] + [("V", j) for j in range(32)] + [("W", j) for j in range(6)]
        NL = len(loads)
        st = dict(issued=0, arrived=-1)
        consumed = set()

        def slot(i): return RING + (i % 32) * 4

        def issue(i):
            kind, j = loads[i]
            r = slot(i)
            if i >= 32: assert (i - 32) in consumed, f"slot for load {i} not free"
            if kind in "KV":
                srd = "s[40:43]" if kind == "K" else "s[44:47]"
                if kind == "V" and j == 0:
                    A("s_mov_b32 s7, 0")
                A(f"buffer_load_dwordx4 v[{r}:{r+3}], v1, {srd}, s7 offen nt")
                if j < 31:
                    A("s_add_u32 s7, s7, 0x2000")
            else:
                if j < 2:
                    A(f"buffer_load_dwordx4 v[{r}:{r+3}], v3, s[52:55], 0 offen offset:{j*1280} nt")
                else:
                    A(f"buffer_load_dwordx4 v[{r}:{r+3}], v2, s[48:51], 0 offen offset:{(j-2)*1280} nt")
            st["issued"] += 1

        def need(i):
            if st["arrived"] >= i: return
            A(f"s_waitcnt vmcnt({st['issued'] - 1 - i})")
            st["arrived"] = i

        def kgroup(p):
            rs = [slot(4*p + u) for u in range(4)]
            for k in range(4):
                for u in range(4):
                    c = "0" if k == 0 else f"v{26+u}"
                    A(f"v_dot2_f32_bf16 v{26+u}, v{rs[u]+k}, v{4+k}, {c}")
            A("v_add_f32_dpp v30, v26, v26 row_ror:8 row_mask:0xf bank_mask:0x3")
            A("v_add_f32_dpp v31, v28, v28 row_ror:8 row_mask:0xf bank_mask:0x3")
            A("v_add_f32_dpp v30, v27, v27 row_ror:8 row_mask:0xf bank_mask:0xc")
            A("v_add_f32_dpp v31, v29, v29 row_ror:8 row_mask:0xf bank_mask:0xc")
            A("v_add_f32_dpp v32, v30, v30 row_half_mirror row_mask:0xf bank_mask:0x5")
            A("v_add_f32_dpp v32, v31, v31 row_half_mirror row_mask:0xf bank_mask:0xa")
            A("v_add_f32_dpp v32, v32, v32 quad_perm:[1,0,3,2] row_mask:0xf bank_mask:0xf")
            S = 24 + (p >> 2)
            if (p & 3) == 0:
                A(f"v_add_f32_dpp v{S}, v32, v32 quad_perm:[2,3,0,1] row_mask:0xf bank_mask:0xf")
            else:
                A(f"v_add_f32_dpp v32, v32, v32 quad_perm:[2,3,0,1] row_mask:0xf bank_mask:0xf")
                m = 8 + 2 * ((p & 3) - 1)
                A(f"v_cndmask_b32_e64 v{S}, v{S}, v32, s[{m}:{m+1}]")
            for u in range(4): consumed.add(4*p + u)

        def softmax():
            A("v_cvt_pk_bf16_f32 v26, v24, v25")
            A("v_lshlrev_b32 v24, 16, v26")
            A("v_and_b32 v25, 0xffff0000, v26")
            A(f"v_mul_f32 v24, {SCALE:#x}, v24")
            A(f"v_mul_f32 v25, {SCALE:#x}, v25")
            A("v_cvt_pk_bf16_f32 v26, v24, v25")
            A("v_lshlrev_b32 v24, 16, v26")
            A("v_and_b32 v25, 0xffff0000, v26")
            A("v_max_f32 v27, v24, v25")
            self.red64_lane63("v_max_f32", 27)
            A("v_readlane_b32 s60, v27, 63")
            A("v_subrev_f32 v24, s60, v24")
            A("v_subrev_f32 v25, s60, v25")
            A(f"v_mul_f32 v24, {LOG2E:#x}, v24")
            A(f"v_mul_f32 v25, {LOG2E:#x}, v25")
            A("v_exp_f32 v24, v24")
            A("v_exp_f32 v25, v25")
            A("v_add_f32 v27, v24, v25")
            A("v_cvt_pk_bf16_f32 v24, v24, v24")
            A("v_cvt_pk_bf16_f32 v25, v25, v25")
            self.red64_lane63("v_add_f32", 27)
            A("v_readlane_b32 s61, v27, 63")
            A("v_mov_b32 v28, s60")
            A("v_mov_b32 v29, s61")
            A("s_lshl_b32 s14, s3, 3")
            A("v_mov_b32 v30, s14")
            A("s_lshl_b32 s14, s3, 2")
            A("v_mov_b32 v31, s14")
            A("v_mov_b32 v32, 1")
            A("s_mov_b64 exec, 1")
            A(f"ds_write_b64 v30, v[28:29] offset:{ML}")
            A(f"ds_write_b32 v31, v32 offset:{MLF}")
            A("s_mov_b64 exec, -1")
            self.stamp(3)

        def tile_of(j):
            p = (j >> 2) & 3; u = j & 3
            q = [0, 2, 1, 3][u]
            return 24 + (j >> 4), 4 * q + p

        def buildA(j):
            P, c = tile_of(j)
            a = 12 + (j & 1) * 4
            for r in range(4):
                A(f"v_and_b32_dpp v{a+r}, v{P}, v{8+r} row_newbcast:{c} row_mask:0xf bank_mask:0xf")

        def vtile(j):
            a = 12 + (j & 1) * 4
            r = slot(32 + j)
            c = "0" if j == 0 else "v[20:23]"
            A(f"v_mfma_f32_16x16x32_bf16 v[20:23], v[{a}:{a+3}], v[{r}:{r+3}], {c}")
            consumed.add(32 + j)
            if j + 1 < 32: buildA(j + 1)

        def gml():
            self.spin_lds(GFLAG, 32, 39)
            A(f"ds_read_b64 v[36:37], v39 offset:{GML}")
            A("s_waitcnt lgkmcnt(0)")
            A("v_sub_f32 v35, s60, v36")
            A(f"v_mul_f32 v35, {LOG2E:#x}, v35")
            A("v_exp_f32 v35, v35")
            A("v_mul_f32 v35, v35, v37")

        tasks = [("kg", p, 4*p + 3) for p in range(8)] + [("sm", 0, 31)]
        for j in range(32):
            if j == self.gmlpos: tasks.append(("gml", 0, -1))
            tasks.append(("v", j, 32 + j))

        def run(t):
            kind, x, nd = t
            if kind == "kg": kgroup(x)
            elif kind == "sm":
                softmax(); buildA(0)
            elif kind == "gml": gml()
            else: vtile(x)

        for i in range(D): issue(i)
        A("s_mov_b32 s44, s20"); A("s_mov_b32 s45, s21")
        self.srd(48, 24, 4096 * 640 * 2)
        self.srd(52, 32, 1728 * 640 * 2)
        self.srd(56, 38, WS_SIZE)
        A("s_barrier")
        self.masks(8, 26, 27)
        A("v_mov_b32 v39, 0")
        for p, val in ((8, 0x22222222), (10, 0x44444444), (12, 0x88888888)):
            A(f"s_mov_b32 s{p}, {val:#x}"); A(f"s_mov_b32 s{p+1}, {val:#x}")
        A("v_lshrrev_b32 v26, 4, v0")
        A("v_and_b32 v27, 15, v0")
        A("s_mul_i32 s14, s5, 160")
        A("v_lshlrev_b32 v28, 4, v27")
        A("v_add_u32 v28, s14, v28")
        A(f"v_mov_b32 v29, {OOB:#x}")
        A("v_cmp_gt_u32 vcc, 10, v27")
        A("v_cndmask_b32 v28, v29, v28, vcc")
        A("s_lshl_b32 s14, s4, 7"); A("s_lshl_b32 s15, s3, 4"); A("s_add_u32 s14, s14, s15")
        A("s_mul_i32 s14, s14, 1280")
        A("v_mul_u32_u24 v29, 5120, v26")
        A("v_add3_u32 v2, v28, v29, s14")
        A("s_lshl_b32 s14, s4, 6"); A("s_lshl_b32 s15, s3, 3"); A("s_add_u32 s14, s14, s15")
        A("s_mul_i32 s14, s14, 1280")
        A("v_mul_u32_u24 v29, 2560, v26")
        A("v_add3_u32 v3, v28, v29, s14")
        A("v_and_b32 v29, 1, v26")
        A("v_lshlrev_b32 v29, 4, v29")
        A("v_lshlrev_b32 v33, 5, v27")
        A("s_lshl_b32 s14, s3, 9")
        A("v_add3_u32 v33, v33, v29, s14")
        A("v_and_b32 v29, 7, v27")
        A("v_lshlrev_b32 v29, 10, v29")
        A("v_lshrrev_b32 v30, 3, v27")
        A("v_lshlrev_b32 v30, 4, v30")
        A("v_lshlrev_b32 v31, 5, v26")
        A("v_add3_u32 v34, v29, v30, v31")
        A("s_lshl_b32 s14, s4, 13"); A("s_lshl_b32 s15, s3, 7"); A("s_add_u32 s14, s14, s15")
        A(f"s_add_u32 s14, s14, {H1O:#x}")
        A("v_add_u32 v34, s14, v34")
        A("s_lshl_b32 s14, s3, 4")
        A("v_lshlrev_b32 v38, 2, v26")
        A("v_add_u32 v38, s14, v38")

        ti = 0
        qdone = False
        for i in range(D, NL):
            kind = loads[i][0]
            Dh = D if kind != "W" else self.DW
            while i >= 32 and (i - 32) not in consumed:
                t = tasks[ti]; need(t[2]); run(t); ti += 1
            if st["issued"] - (st["arrived"] + 1) >= Dh:
                need(i - Dh)
            issue(i)
            if i == N1 - 1:
                self.stamp(1)
                self.spin_lds(QFLAG, 32, 39)
                A("v_and_b32 v32, 15, v0")
                A("v_lshlrev_b32 v32, 4, v32")
                A(f"ds_read_b128 v[4:7], v32 offset:{QL}")
                A("s_waitcnt lgkmcnt(0)")
                self.stamp(2)
                qdone = True
            if qdone:
                budget = 2
                while ti < len(tasks) and budget > 0 and tasks[ti][2] <= st["arrived"]:
                    t = tasks[ti]; run(t); ti += 1
                    budget -= 2 if t[0] in ("kg", "sm") else 1
        while ti < len(tasks):
            t = tasks[ti]; need(t[2]); run(t); ti += 1
        for r in range(4):
            A(f"v_mul_f32 v{20+r}, v{20+r}, v35")
        A(f"ds_write_b128 v33, v[20:23] offset:{OL}")
        A("s_waitcnt lgkmcnt(0)")
        self.stamp(4)
        A("s_barrier")
        self.stamp(5)
        A("buffer_load_dwordx4 v[24:27], v34, s[56:59], 0 offen sc1")
        A(f"ds_read_b32 v36, v38 offset:{HL}")
        A("s_mov_b32 s14, 0x01000100"); A("s_mov_b32 s15, 0x03020302")
        A("s_waitcnt lgkmcnt(0)")
        A("v_perm_b32 v37, v36, v36, s14")
        A("v_perm_b32 v36, v36, v36, s15")
        for r in range(4): A(f"v_and_b32 v{12+r}, v37, v{8+r}")
        for r in range(4): A(f"v_and_b32 v{16+r}, v36, v{8+r}")
        w = lambda j: slot(64 + j)
        A("s_waitcnt vmcnt(5)")
        A(f"v_mfma_f32_16x16x32_bf16 v[20:23], v[12:15], v[{w(0)}:{w(0)+3}], 0")
        A(f"v_mfma_f32_16x16x32_bf16 v[20:23], v[16:19], v[{w(1)}:{w(1)+3}], v[20:23]")
        l0, l1, l2 = self.L("h1"), self.L("h1d"), self.L("h1c")
        A(f"s_mov_b32 s14, {SPIN_GLB}")
        A(f"s_branch {l2}")
        A(f"{l0}:")
        A("buffer_load_dwordx4 v[24:27], v34, s[56:59], 0 offen sc1")
        A(f"{l2}:")
        A("s_waitcnt vmcnt(0)")
        A("v_min_u32 v28, v25, v27")
        A("v_cmp_eq_u32 vcc, s69, v28")
        A("s_nop 1")
        A("s_cmp_eq_u64 vcc, -1")
        A(f"s_cbranch_scc1 {l1}")
        A("s_sub_u32 s14, s14, 1")
        A("s_cmp_lg_u32 s14, 0")
        A(f"s_cbranch_scc1 {l0}")
        A(f"{l1}:")
        self.stamp(6)
        for stp in ("quad_perm:[1,0,3,2]", "quad_perm:[2,3,0,1]", "row_half_mirror"):
            A(f"v_add_f32_dpp v24, v24, v24 {stp} row_mask:0xf bank_mask:0xf")
            A(f"v_add_f32_dpp v26, v26, v26 {stp} row_mask:0xf bank_mask:0xf")
        A("v_cvt_pk_bf16_f32 v24, v24, v24")
        A("v_cvt_pk_bf16_f32 v26, v26, v26")
        for t in range(4):
            src = 24 if (t & 1) == 0 else 26
            c = 0 if t < 2 else 8
            a = 12 + (t & 1) * 4
            for r in range(4):
                A(f"v_and_b32_dpp v{a+r}, v{src}, v{8+r} row_newbcast:{c} row_mask:0xf bank_mask:0xf")
            A(f"v_mfma_f32_16x16x32_bf16 v[20:23], v[{a}:{a+3}], v[{w(2+t)}:{w(2+t)+3}], v[20:23]")
        A(f"ds_write_b128 v33, v[20:23] offset:{YL}")
        A("s_waitcnt lgkmcnt(0)")
        A("s_barrier")
        self.stamp(7)
        if self.stamps:
            A("s_cmp_lg_u32 s3, 0")
            A("s_cbranch_scc1 L_end")
            self.write_stamps(2, 8)
        A("s_endpgm")

    def aux_common(self):
        A = self.A
        A("s_setprio 3")
        A("s_waitcnt lgkmcnt(0)")
        self.srd(40, 16, 1280)
        A("v_lshlrev_b32 v9, 2, v0")
        for i in range(5):
            A(f"buffer_load_dword v{4+i}, v9, s[40:43], 0 offen offset:{i*256}")
        self.srd(56, 38, WS_SIZE)
        self.srd(60, 36, 256)

    def aux0(self):
        A = self.A
        A("v_mov_b32 v30, 0"); A("v_mov_b32 v31, 0"); A("v_mov_b32 v32, 0"); A("v_mov_b32 v33, 0")
        A("v_lshlrev_b32 v34, 2, v0")
        A("s_mov_b64 exec, 0xffff")
        A(f"ds_write_b32 v34, v30 offset:{QFLAG}")
        A("s_mov_b64 exec, -1")
        A("s_lshl_b32 s7, s6, 10")
        A("v_lshlrev_b32 v35, 4, v0")
        A("v_add_u32 v35, s7, v35")
        A(f"s_mov_b32 s8, {H0F:#x}"); A(f"s_mov_b32 s9, {H1O:#x}")
        A("buffer_store_dwordx4 v[30:33], v35, s[56:59], 0 offen sc1")
        A("buffer_store_dwordx4 v[30:33], v35, s[56:59], s8 offen sc1")
        A("buffer_store_dwordx4 v[30:33], v35, s[56:59], s9 offen sc1")
        A("s_lshl_b32 s7, s6, 4"); A(f"s_add_u32 s7, s7, {H1ML:#x}")
        A(f"v_mov_b32 v36, {OOB:#x}")
        A("v_mov_b32 v37, s7")
        A("v_cmp_eq_u32 vcc, 0, v0")
        A("v_cndmask_b32 v36, v36, v37, vcc")
        A("buffer_store_dwordx4 v[30:33], v36, s[56:59], 0 offen sc1")
        A("s_mul_i32 s7, s5, 20"); A("s_lshl_b32 s7, s7, 10"); A("s_lshl_b32 s10, s4, 5"); A("s_add_u32 s7, s7, s10")
        A(f"s_add_u32 s7, s7, {H2:#x}")
        A("v_lshrrev_b32 v37, 1, v0"); A("v_lshlrev_b32 v37, 10, v37")
        A("v_and_b32 v38, 1, v0"); A("v_lshlrev_b32 v38, 4, v38")
        A("v_add3_u32 v37, v37, v38, s7")
        A(f"v_mov_b32 v38, {OOB:#x}")
        A("v_cmp_gt_u32 vcc, 40, v0")
        A("v_cndmask_b32 v37, v38, v37, vcc")
        A("buffer_store_dwordx4 v[30:33], v37, s[56:59], 0 offen sc1")
        A("s_waitcnt lgkmcnt(0)")
        A("s_barrier")
        self.srd(44, 22, 640 * 4096 * 2)
        A("v_lshrrev_b32 v38, 4, v0")
        A("v_mul_u32_u24 v39, 20, v38")
        A("s_mul_i32 s7, s5, 80")
        A("v_add_u32 v39, s7, v39")
        A("v_lshlrev_b32 v39, 13, v39")
        A("v_and_b32 v38, 15, v0"); A("v_lshlrev_b32 v38, 4, v38")
        A("s_lshl_b32 s7, s4, 8")
        A("v_add3_u32 v39, v39, v38, s7")
        A("s_mov_b32 s7, 0")
        for t in range(20):
            A(f"buffer_load_dwordx4 v[{40+4*t}:{43+4*t}], v39, s[44:47], s7 offen nt")
            if t < 19: A("s_add_u32 s7, s7, 0x2000")
        A("s_waitcnt vmcnt(25)")
        self.stamp(1)
        self.layernorm(XN0)
        A("s_waitcnt vmcnt(20)")
        self.stamp(2)
        A("v_mov_b32 v10, s6"); A("v_mov_b32 v11, 1")
        A("s_mov_b64 exec, 1")
        A("buffer_store_byte v11, v10, s[60:63], 0 offen sc1")
        A("s_mov_b64 exec, -1")
        A("v_lshrrev_b32 v20, 4, v0")
        A("v_mul_u32_u24 v20, 40, v20")
        A("s_mul_i32 s7, s5, 160")
        A("v_add_u32 v20, s7, v20")
        A("s_waitcnt lgkmcnt(0)")
        for i in range(5):
            A(f"ds_read_b64 v[{10+2*i}:{11+2*i}], v20 offset:{XN0+8*i}")
        self.masks(4, 21, 22)
        A("s_mov_b32 s8, 0x01000100"); A("s_mov_b32 s9, 0x03020302")
        A("s_waitcnt lgkmcnt(0)")
        for t in range(20):
            a = 24 + (t & 1) * 4
            A(f"v_perm_b32 v21, v{10 + t//2}, v{10 + t//2}, s{8 + (t & 1)}")
            for r in range(4): A(f"v_and_b32 v{a+r}, v21, v{4+r}")
            A(f"s_waitcnt vmcnt({19 - t + 1})")
            c = "0" if t == 0 else "v[120:123]"
            A(f"v_mfma_f32_16x16x32_bf16 v[120:123], v[{a}:{a+3}], v[{40+4*t}:{43+4*t}], {c}")
        A("s_mov_b32 s8, -1"); A("s_mov_b32 s9, 0")
        A("v_and_b32 v20, 15, v0"); A("v_lshlrev_b32 v20, 6, v20")
        A("v_bfe_u32 v21, v0, 4, 1"); A("v_lshlrev_b32 v21, 5, v21")
        A("v_lshrrev_b32 v22, 5, v0"); A("v_lshlrev_b32 v22, 4, v22")
        A("v_add3_u32 v20, v20, v21, v22")
        A("s_lshl_b32 s7, s6, 10")
        A("v_add_u32 v20, s7, v20")
        A("v_cndmask_b32_e64 v24, v122, v120, s[8:9]")
        A("v_mov_b32 v25, s69")
        A("v_cndmask_b32_e64 v26, v123, v121, s[8:9]")
        A("v_mov_b32 v27, s69")
        A("buffer_store_dwordx4 v[24:27], v20, s[56:59], 0 offen sc1")
        self.stamp(3)
        A("s_lshl_b32 s7, s4, 3")
        A("v_mov_b32 v20, s7")
        l0, l1 = self.L("gf"), self.L("gfd")
        A(f"s_mov_b32 s14, {SPIN_GLB}")
        A(f"{l0}:")
        A("buffer_load_dwordx2 v[22:23], v20, s[60:63], 0 offen sc1")
        A("s_waitcnt vmcnt(0)")
        A("v_and_b32 v22, v22, v23")
        A("v_cmp_eq_u32 vcc, 0x01010101, v22")
        A("s_nop 1")
        A("s_cmp_eq_u64 vcc, -1")
        A(f"s_cbranch_scc1 {l1}")
        A("s_sub_u32 s14, s14, 1"); A("s_cmp_lg_u32 s14, 0"); A(f"s_cbranch_scc1 {l0}")
        A(f"{l1}:")
        self.stamp(4)
        A("s_lshl_b32 s7, s4, 13")
        A("v_lshlrev_b32 v20, 4, v0")
        A("v_add_u32 v20, s7, v20")
        A("v_add_u32 v21, 0x1000, v20")
        def issue():
            for sp in range(8):
                A(f"buffer_load_dwordx4 v[{40+4*sp}:{43+4*sp}], v{20 + (sp >> 2)}, s[56:59], 0 offen offset:{(sp & 3)*1024} sc1")
        self.poll_loop(issue, [41 + 2*i for i in range(16)], 22)
        for sp in range(1, 8):
            A(f"v_add_f32 v40, v40, v{40+4*sp}")
            A(f"v_add_f32 v42, v42, v{42+4*sp}")
        A("v_cvt_pk_bf16_f32 v40, v40, v42")
        A("v_lshlrev_b32 v21, 2, v0")
        A(f"ds_write_b32 v21, v40 offset:{QL}")
        A("v_mov_b32 v22, 1"); A("v_mov_b32 v23, 0")
        A("s_waitcnt lgkmcnt(0)")
        A("s_mov_b64 exec, 1")
        A(f"ds_write_b32 v23, v22 offset:{QFLAG}")
        A("s_mov_b64 exec, -1")
        self.stamp(5)
        A("v_and_b32 v20, 7, v0")
        A("v_lshlrev_b32 v21, 2, v20")
        A("v_lshlrev_b32 v20, 3, v20")
        l0, l1 = self.L("ml"), self.L("mld")
        A(f"s_mov_b32 s14, {SPIN_LDS*4}")
        A(f"{l0}:")
        A(f"ds_read_b32 v24, v21 offset:{MLF}")
        A(f"ds_read_b64 v[26:27], v20 offset:{ML}")
        A("s_waitcnt lgkmcnt(0)")
        A("v_cmp_ne_u32 vcc, 0, v24")
        A("s_nop 1")
        A("s_cmp_eq_u64 vcc, -1")
        A(f"s_cbranch_scc1 {l1}")
        A("s_sub_u32 s14, s14, 1"); A("s_cmp_lg_u32 s14, 0"); A(f"s_cbranch_scc1 {l0}")
        A(f"{l1}:")
        self.stamp(6)
        A("v_mov_b32 v28, v26")
        self.red8("v_max_f32", 28)
        A("v_sub_f32 v26, v26, v28")
        A(f"v_mul_f32 v26, {LOG2E:#x}, v26")
        A("v_exp_f32 v26, v26")
        A("v_mul_f32 v30, v26, v27")
        self.red8("v_add_f32", 30)
        A("v_mov_b32 v29, s69"); A("v_mov_b32 v31, s69")
        A("buffer_store_dwordx4 v[28:31], v36, s[56:59], 0 offen sc1")
        A("s_lshl_b32 s7, s4, 7"); A(f"s_add_u32 s7, s7, {H1ML:#x}")
        A("v_lshlrev_b32 v21, 1, v20")
        A("v_add_u32 v21, s7, v21")
        def issue2():
            A("buffer_load_dwordx4 v[24:27], v21, s[56:59], 0 offen sc1")
        self.poll_loop(issue2, [25, 27], 22)
        A("v_mov_b32 v28, v24")
        self.red8("v_max_f32", 28)
        A("v_sub_f32 v24, v24, v28")
        A(f"v_mul_f32 v24, {LOG2E:#x}, v24")
        A("v_exp_f32 v24, v24")
        A("v_mul_f32 v29, v24, v26")
        self.red8("v_add_f32", 29)
        A("v_rcp_f32 v30, v29")
        A("v_fma_f32 v31, -v29, v30, 1.0")
        A("v_fma_f32 v29, v31, v30, v30")
        A("v_mov_b32 v22, 1")
        A("s_mov_b64 exec, 1")
        A(f"ds_write_b64 v23, v[28:29] offset:{GML}")
        A(f"ds_write_b32 v23, v22 offset:{GFLAG}")
        A("s_mov_b64 exec, -1")
        self.stamp(7)
        A("v_lshlrev_b32 v20, 3, v0")
        A("v_mov_b32 v41, s69"); A("v_mov_b32 v43, s69")
        A("s_waitcnt lgkmcnt(0)")
        A("s_barrier")
        for wv in range(8):
            A(f"ds_read_b64 v[{44+2*wv}:{45+2*wv}], v20 offset:{OL + wv*512}")
        self._sum8(44, 40, 42)
        A(f"s_mov_b32 s9, {H1O:#x}")
        A("buffer_store_dwordx4 v[40:43], v35, s[56:59], s9 offen sc1")
        self.stamp(8)
        A("s_barrier")
        for wv in range(8):
            A(f"ds_read_b64 v[{44+2*wv}:{45+2*wv}], v20 offset:{YL + wv*512}")
        A("v_mov_b32 v65, s69"); A("v_mov_b32 v67, s69")
        self._sum8(44, 64, 66)
        A("buffer_store_dwordx4 v[64:67], v37, s[56:59], 0 offen sc1")
        self.stamp(9)
        if self.stamps:
            A("s_getreg_b32 s14, hwreg(HW_REG_XCC_ID)")
            A("s_getreg_b32 s15, hwreg(HW_REG_HW_ID)")
            A("s_waitcnt lgkmcnt(0)")
            A("s_mov_b64 exec, 1")
            A("s_lshl_b32 s68, s2, 8"); A(f"s_add_u32 s68, s68, {STAMP}")
            A("v_mov_b32 v4, s68"); A("v_mov_b32 v8, s14"); A("v_mov_b32 v9, 0"); A("v_mov_b32 v10, s15"); A("v_mov_b32 v11, 0")
            A("buffer_store_dwordx4 v[8:11], v4, s[56:59], 0 offen")
            A("s_waitcnt vmcnt(0)")
            A("s_mov_b64 exec, -1")
            for k in range(1, 10):
                A(f"s_mov_b32 s{70+2*(k-1)}, s{70+2*k}"); A(f"s_mov_b32 s{71+2*(k-1)}, s{71+2*k}")
            self.write_stamps(10, 9)
        A("s_endpgm")

    def _sum8(self, base, d0, d1):
        A = self.A
        A("s_waitcnt lgkmcnt(0)")
        for (x, y) in ((0, 1), (2, 3), (4, 5), (6, 7)):
            A(f"v_add_f32 v{base+2*x}, v{base+2*x}, v{base+2*y}")
            A(f"v_add_f32 v{base+2*x+1}, v{base+2*x+1}, v{base+2*y+1}")
        for (x, y) in ((0, 2), (4, 6)):
            A(f"v_add_f32 v{base+2*x}, v{base+2*x}, v{base+2*y}")
            A(f"v_add_f32 v{base+2*x+1}, v{base+2*x+1}, v{base+2*y+1}")
        A(f"v_add_f32 v{d0}, v{base}, v{base+8}")
        A(f"v_add_f32 v{d1}, v{base+1}, v{base+9}")

    def aux1(self):
        A = self.A
        A("s_barrier")
        self.srd(44, 28, 640 * 1728 * 2)
        self.srd(48, 30, 640 * 1728 * 2)
        A("v_lshrrev_b32 v38, 3, v0")
        A("v_mul_u32_u24 v39, 10, v38")
        A("s_mul_i32 s7, s5, 80")
        A("v_add_u32 v39, s7, v39")
        A("v_mul_u32_u24 v39, 3456, v39")
        A("v_and_b32 v38, 7, v0"); A("v_lshlrev_b32 v38, 4, v38")
        A("s_lshl_b32 s7, s4, 7")
        A("s_cmp_ge_u32 s4, 27")
        A(f"s_cselect_b32 s7, {OOB:#x}, s7")
        A("v_add3_u32 v39, v39, v38, s7")
        A("s_mov_b32 s7, 0")
        for t in range(10):
            A(f"buffer_load_dwordx4 v[{40+8*t}:{43+8*t}], v39, s[44:47], s7 offen nt")
            A(f"buffer_load_dwordx4 v[{44+8*t}:{47+8*t}], v39, s[48:51], s7 offen nt")
            if t < 9: A("s_add_u32 s7, s7, 3456")
        A("s_waitcnt vmcnt(20)")
        self.layernorm(XN1)
        A("v_lshrrev_b32 v20, 3, v0")
        A("v_mul_u32_u24 v20, 20, v20")
        A("s_mul_i32 s7, s5, 160")
        A("v_add_u32 v20, s7, v20")
        A("s_waitcnt lgkmcnt(0)")
        A(f"v_add_u32 v20, {XN1}, v20")
        A("ds_read2_b32 v[10:11], v20 offset0:0 offset1:1")
        A("ds_read2_b32 v[12:13], v20 offset0:2 offset1:3")
        A("ds_read_b32 v14, v20 offset:16")
        self.masks(4, 21, 22)
        A("s_mov_b32 s8, 0x01000100"); A("s_mov_b32 s9, 0x03020302")
        A("s_waitcnt lgkmcnt(0)")
        for t in range(10):
            a = 24 + (t & 1) * 4
            A(f"v_perm_b32 v21, v{10 + t//2}, v{10 + t//2}, s{8 + (t & 1)}")
            for r in range(4): A(f"v_and_b32 v{a+r}, v21, v{4+r}")
            A(f"s_waitcnt vmcnt({18 - 2*t})")
            c1 = "0" if t == 0 else "v[120:123]"
            c3 = "0" if t == 0 else "v[124:127]"
            A(f"v_mfma_f32_16x16x32_bf16 v[120:123], v[{a}:{a+3}], v[{40+8*t}:{43+8*t}], {c1}")
            A(f"v_mfma_f32_16x16x32_bf16 v[124:127], v[{a}:{a+3}], v[{44+8*t}:{47+8*t}], {c3}")
        A("v_lshrrev_b32 v20, 5, v0"); A("v_lshlrev_b32 v20, 8, v20")
        A("v_and_b32 v21, 7, v0"); A("v_lshlrev_b32 v21, 5, v21")
        A("v_bfe_u32 v22, v0, 4, 1"); A("v_lshlrev_b32 v22, 4, v22")
        A("v_add3_u32 v20, v20, v21, v22")
        A("s_mov_b32 exec_lo, 0x00ff00ff"); A("s_mov_b32 exec_hi, 0xff00ff00")
        A(f"ds_write_b128 v20, v[120:123] offset:{GU}")
        A(f"ds_write_b128 v20, v[124:127] offset:{GU+512}")
        A("s_mov_b64 exec, -1")
        A("v_lshrrev_b32 v20, 5, v0"); A("v_lshlrev_b32 v20, 9, v20")
        A("v_and_b32 v21, 31, v0"); A("v_lshlrev_b32 v21, 3, v21")
        A("v_add_u32 v20, v20, v21")
        A("s_waitcnt lgkmcnt(0)")
        A(f"ds_read_b64 v[24:25], v20 offset:{GU}")
        A(f"ds_read_b64 v[26:27], v20 offset:{GU+256}")
        A("s_waitcnt lgkmcnt(0)")
        A("v_add_f32 v28, v24, v26"); A("v_mov_b32 v29, s69")
        A("v_add_f32 v30, v25, v27"); A("v_mov_b32 v31, s69")
        A("v_mov_b32 v23, 0")
        self.spin_lds(QFLAG, 22, 23)
        A("s_lshl_b32 s7, s6, 10"); A(f"s_add_u32 s7, s7, {H0F:#x}")
        A("v_lshlrev_b32 v20, 4, v0")
        A("v_add_u32 v20, s7, v20")
        A("buffer_store_dwordx4 v[28:31], v20, s[56:59], 0 offen sc1")
        A("s_lshl_b32 s7, s4, 13"); A(f"s_add_u32 s7, s7, {H0F:#x}")
        A("v_lshlrev_b32 v20, 4, v0")
        A("v_add_u32 v20, s7, v20")
        A("v_add_u32 v21, 0x1000, v20")
        def issue():
            for sp in range(8):
                A(f"buffer_load_dwordx4 v[{40+4*sp}:{43+4*sp}], v{20 + (sp >> 2)}, s[56:59], 0 offen offset:{(sp & 3)*1024} sc1")
        self.poll_loop(issue, [41 + 2*i for i in range(16)], 22)
        for sp in range(1, 8):
            A(f"v_add_f32 v40, v40, v{40+4*sp}")
            A(f"v_add_f32 v42, v42, v{42+4*sp}")
        A("v_cvt_pk_bf16_f32 v40, v40, v42")
        A("v_lshlrev_b32 v44, 16, v40")
        A("v_and_b32 v45, 0xffff0000, v40")
        A("v_mov_b32 v46, v44"); A("v_mov_b32 v47, v45")
        A("v_permlane32_swap_b32 v46, v48")
        A("v_permlane32_swap_b32 v47, v49")
        for g, u in ((44, 48), (45, 49)):
            A(f"v_mul_f32 v50, {LOG2E ^ 0x80000000:#x}, v{g}")
            A("v_exp_f32 v50, v50")
            A("v_add_f32 v50, 1.0, v50")
            A("v_rcp_f32 v51, v50")
            A(f"v_mul_f32 v{g}, v{g}, v51")
        A("v_cvt_pk_bf16_f32 v50, v44, v45")
        A("v_lshlrev_b32 v44, 16, v50")
        A("v_and_b32 v45, 0xffff0000, v50")
        A("v_mul_f32 v44, v44, v48")
        A("v_mul_f32 v45, v45, v49")
        A("v_cvt_pk_bf16_f32 v50, v44, v45")
        A("v_lshlrev_b32 v21, 2, v0")
        A("s_mov_b32 exec_lo, -1"); A("s_mov_b32 exec_hi, 0")
        A(f"ds_write_b32 v21, v50 offset:{HL}")
        A("s_mov_b64 exec, -1")
        self.stamp(1)
        lskip = self.L("nored")
        A("s_cmp_ge_u32 s2, 160")
        A(f"s_cbranch_scc1 {lskip}")
        A("v_lshlrev_b32 v20, 2, v0")
        l0, l1 = self.L("af"), self.L("afd")
        A(f"s_mov_b32 s14, {SPIN_GLB}")
        A(f"{l0}:")
        A("buffer_load_dword v22, v20, s[60:63], 0 offen sc1")
        A("s_waitcnt vmcnt(0)")
        A("v_cmp_eq_u32 vcc, 0x01010101, v22")
        A("s_nop 1")
        A("s_cmp_eq_u64 vcc, -1")
        A(f"s_cbranch_scc1 {l1}")
        A("s_sub_u32 s14, s14, 1"); A("s_cmp_lg_u32 s14, 0"); A(f"s_cbranch_scc1 {l0}")
        A(f"{l1}:")
        A("s_lshl_b32 s7, s2, 3")
        A("v_mov_b32 v20, s7")
        A("buffer_load_dwordx2 v[30:31], v20, s[40:43], 0 offen")
        self.srd(64, 34, 1280)
        A(f"{lskip}:")
        self.stamp(2)
        A("s_waitcnt vmcnt(0) lgkmcnt(0)")
        A("s_barrier")
        A("s_barrier")
        lend = self.L("a1end")
        A("s_cmp_ge_u32 s2, 160")
        A(f"s_cbranch_scc1 {lend}")
        A("s_lshl_b32 s7, s2, 10"); A(f"s_add_u32 s7, s7, {H2:#x}")
        A("v_and_b32 v20, 31, v0"); A("v_lshlrev_b32 v20, 5, v20")
        A("v_lshrrev_b32 v21, 5, v0"); A("v_lshlrev_b32 v21, 4, v21")
        A("v_add3_u32 v20, v20, v21, s7")
        def issue2():
            A("buffer_load_dwordx4 v[24:27], v20, s[56:59], 0 offen sc1")
        self.poll_loop(issue2, [25, 27], 22)
        for n in (8, 4, 2, 1):
            A(f"v_add_f32_dpp v24, v24, v24 row_ror:{n} row_mask:0xf bank_mask:0xf")
            A(f"v_add_f32_dpp v26, v26, v26 row_ror:{n} row_mask:0xf bank_mask:0xf")
        A("v_add_f32_dpp v24, v24, v24 row_bcast:15 row_mask:0xa bank_mask:0xf")
        A("v_add_f32_dpp v26, v26, v26 row_bcast:15 row_mask:0xa bank_mask:0xf")
        A("v_lshlrev_b32 v32, 16, v30"); A("v_and_b32 v33, 0xffff0000, v30")
        A("v_lshlrev_b32 v34, 16, v31"); A("v_and_b32 v35, 0xffff0000, v31")
        A("v_readlane_b32 s8, v24, 31"); A("v_readlane_b32 s9, v26, 31")
        A("v_readlane_b32 s10, v24, 63"); A("v_readlane_b32 s11, v26, 63")
        A("v_add_f32 v32, s8, v32"); A("v_add_f32 v33, s9, v33")
        A("v_add_f32 v34, s10, v34"); A("v_add_f32 v35, s11, v35")
        A("v_cvt_pk_bf16_f32 v32, v32, v33")
        A("v_cvt_pk_bf16_f32 v33, v34, v35")
        A("s_lshl_b32 s7, s2, 3")
        A("v_mov_b32 v20, s7")
        A("s_mov_b64 exec, 1")
        A("buffer_store_dwordx2 v[32:33], v20, s[64:67], 0 offen")
        A("s_mov_b64 exec, -1")
        A(f"{lend}:")
        self.stamp(3)
        if self.stamps:
            for k in range(1, 4):
                A(f"s_waitcnt lgkmcnt(0)")
                A(f"s_mov_b32 s{70+2*(k-1)}, s{70+2*k}"); A(f"s_mov_b32 s{71+2*(k-1)}, s{71+2*k}")
            self.write_stamps(19, 3)
        A("s_endpgm")

    def build(self):
        A = self.A
        A(f"; @launch grid=(256,1,1) block=(640,1,1) lds={LDS_SIZE}")
        A('.amdgcn_target "amdgcn-amd-amdhsa--gfx950"')
        A(".text"); A(f".globl {KN}"); A(".p2align 8"); A(f".type {KN},@function"); A(f"{KN}:")
        self.prologue()
        self.streaming()
        A("L_aux:")
        self.aux_common()
        A("s_cmp_eq_u32 s3, 9")
        A("s_cbranch_scc1 L_aux1")
        self.aux0()
        A("L_aux1:")
        self.aux1()
        A("L_end:")
        A("s_endpgm")
        nv = 168
        A('.section .rodata,"a"'); A(".p2align 6"); A(f".amdhsa_kernel {KN}")
        A(f"  .amdhsa_next_free_vgpr {nv}"); A("  .amdhsa_next_free_sgpr 102"); A(f"  .amdhsa_accum_offset {nv}")
        A("  .amdhsa_group_segment_fixed_size 0"); A("  .amdhsa_kernarg_size 96"); A("  .amdhsa_user_sgpr_count 2")
        A("  .amdhsa_user_sgpr_kernarg_segment_ptr 1"); A("  .amdhsa_system_sgpr_workgroup_id_x 1"); A(".end_amdhsa_kernel")
        A.lines = [l for l in A.lines if l is not None]
        return HDR + A.finish()


if __name__ == "__main__":
    ap = argparse.ArgumentParser()
    ap.add_argument("-o", default=f"cdna_kernels/{NAME}.s")
    ap.add_argument("--D", type=int, default=4)
    ap.add_argument("--N1", type=int, default=24)
    ap.add_argument("--DW", type=int, default=10)
    ap.add_argument("--gmlpos", type=int, default=24)
    ap.add_argument("--stamps", action="store_true")
    ap.add_argument("--map", default="xcd")
    a = ap.parse_args()
    g = G(D=a.D, N1=a.N1, DW=a.DW, stamps=a.stamps, gmlpos=a.gmlpos, mapping=a.map)
    open(a.o, "w").write(g.build())
    print("wrote", a.o)
```

```python
import sys, os, argparse
sys.path.insert(0, os.path.dirname(os.path.abspath(__file__)))
from asmlib import Asm

NAME = "parallel_sum__gqa_block_cached__glu_gated_swiglu__decode"
KN = NAME + "_kernel"
HDR = open(f"cdna_kernels/{NAME}.s.ref").read().split("; Override launch")[0]

H0Q, H0F, H1O, H1ML, H2, STAMP = 0x0, 0x40000, 0x80000, 0xC0000, 0xD0000, 0x100000
WS_SIZE = 0x200000
TAG = 0x5AC3A5C3
XN0, XN1, QL, HL = 0x000, 0x500, 0xA00, 0xB00
QFLAG, GFLAG, GML, MLF, ML = 0xB80, 0xB84, 0xB88, 0xBA0, 0xBC0
OL, YL, GU = 0xC00, 0x1C00, 0x2C00
LDS_SIZE = 0x3000
LOG2E = 0x3FB8AA3B
SCALE = 0x3DB504F3
OOB = 0x40000000
SPIN_LDS = 1 << 16
SPIN_GLB = 1 << 12
RING = 40


class G:
    def __init__(self, D=4, N1=24, DW=10, stamps=False, gmlpos=24, prefetch=False, mapping="xcd", hstamps=False):
        self.mapping = mapping
        self.hstamps = hstamps
        if hstamps: stamps = True
        self.A = Asm()
        self.D, self.N1, self.DW, self.stamps, self.gmlpos, self.prefetch = D, N1, DW, stamps, gmlpos, prefetch
        self.lbl = 0

    def L(self, base):
        self.lbl += 1
        return f"L_{base}_{self.lbl}"

    def stamp(self, k):
        if self.stamps:
            self.A(f"s_memrealtime s[{70+2*k}:{71+2*k}]")

    def write_stamps(self, first_slot, n, vt=4):
        if not self.stamps: return
        A = self.A
        A("s_waitcnt lgkmcnt(0)")
        A("s_mov_b64 exec, 1")
        A(f"s_lshl_b32 s68, s2, 8")
        A(f"s_add_u32 s68, s68, {STAMP + first_slot*8}")
        A(f"v_mov_b32 v{vt}, s68")
        for k in range(n):
            A(f"v_mov_b32 v{vt+2}, s{70+2*k}")
            A(f"v_mov_b32 v{vt+3}, s{71+2*k}")
            A(f"buffer_store_dwordx2 v[{vt+2}:{vt+3}], v{vt}, s[56:59], 0 offen offset:{k*8}")
            A("s_waitcnt vmcnt(0)")
        A("s_mov_b64 exec, -1")

    def hstamp_out(self, pairs):
        A = self.A
        A("s_waitcnt lgkmcnt(0) vmcnt(0)")
        self.srd(64, 36, 256)
        A("s_mov_b64 exec, 1")
        for k, slot in pairs:
            A(f"v_mov_b32 v4, {slot*8}")
            A(f"v_mov_b32 v6, s{70+2*k}")
            A(f"v_not_b32 v7, v6")
            A(f"buffer_atomic_umax v6, v4, s[64:67], 0 offen sc1")
            A(f"buffer_atomic_umax v7, v4, s[64:67], 0 offen offset:4 sc1")
            A("s_waitcnt vmcnt(0)")
        A("s_mov_b64 exec, -1")

    def srd(self, base, lo, size):
        A = self.A
        A(f"s_mov_b32 s{base}, s{lo}"); A(f"s_mov_b32 s{base+1}, s{lo+1}")
        A(f"s_mov_b32 s{base+2}, {size:#x}"); A(f"s_mov_b32 s{base+3}, 0x20000")

    def spin_lds(self, off, vtmp, vzero, scnt="s14", stmp="s15"):
        A = self.A
        l0, l1 = self.L("sp"), self.L("spd")
        A(f"s_mov_b32 {scnt}, {SPIN_LDS}")
        A(f"{l0}:")
        A(f"ds_read_b32 v{vtmp}, v{vzero} offset:{off}")
        A("s_waitcnt lgkmcnt(0)")
        A(f"v_readfirstlane_b32 {stmp}, v{vtmp}")
        A("s_nop 0")
        A(f"s_cmp_lg_u32 {stmp}, 0")
        A(f"s_cbranch_scc1 {l1}")
        A(f"s_sub_u32 {scnt}, {scnt}, 1")
        A(f"s_cmp_lg_u32 {scnt}, 0")
        A(f"s_cbranch_scc1 {l0}")
        A(f"{l1}:")

    def red16(self, op, v, full=True):
        A = self.A
        for n in (8, 4, 2, 1):
            A(f"{op}_dpp v{v}, v{v}, v{v} row_ror:{n} row_mask:0xf bank_mask:0xf")

    def red64_lane63(self, op, v):
        A = self.A
        self.red16(op, v)
        A(f"{op}_dpp v{v}, v{v}, v{v} row_bcast:15 row_mask:0xa bank_mask:0xf")
        A(f"{op}_dpp v{v}, v{v}, v{v} row_bcast:31 row_mask:0xc bank_mask:0xf")

    def red8(self, op, v):
        A = self.A
        A(f"{op}_dpp v{v}, v{v}, v{v} quad_perm:[1,0,3,2] row_mask:0xf bank_mask:0xf")
        A(f"{op}_dpp v{v}, v{v}, v{v} quad_perm:[2,3,0,1] row_mask:0xf bank_mask:0xf")
        A(f"{op}_dpp v{v}, v{v}, v{v} row_half_mirror row_mask:0xf bank_mask:0xf")

    def masks(self, m0, t0, t1):
        A = self.A
        A(f"v_and_b32 v{t0}, 1, v0")
        A(f"v_lshlrev_b32 v{t0}, 4, v{t0}")
        A(f"v_mov_b32 v{t1}, 0xffff")
        A(f"v_lshlrev_b32 v{t0}, v{t0}, v{t1}")
        A(f"v_bfe_u32 v{t1}, v0, 1, 2")
        A(f"v_mov_b32 v{m0}, 1")
        A(f"v_lshlrev_b32 v{t1}, v{t1}, v{m0}")
        for r in range(4):
            A(f"v_bfe_i32 v{m0+r}, v{t1}, {r}, 1")
        for r in range(4):
            A(f"v_and_b32 v{m0+r}, v{m0+r}, v{t0}")

    def layernorm(self, xn_off):
        A = self.A
        for i in range(5):
            A(f"v_lshlrev_b32 v{10+2*i}, 16, v{4+i}")
            A(f"v_and_b32 v{11+2*i}, 0xffff0000, v{4+i}")
        A("v_add_f32 v20, v10, v11")
        for i in range(2, 10):
            A(f"v_add_f32 v20, v20, v{10+i}")
        self.red64_lane63("v_add_f32", 20)
        A("v_readlane_b32 s14, v20, 63")
        A(f"v_mov_b32 v21, 0x3acccccd")
        A("v_mul_f32 v21, s14, v21")
        A("v_sub_f32 v22, v10, v21")
        A("v_mul_f32 v20, v22, v22")
        for i in range(1, 10):
            A(f"v_sub_f32 v22, v{10+i}, v21")
            A("v_fmac_f32 v20, v22, v22")
        self.red64_lane63("v_add_f32", 20)
        A("v_readlane_b32 s14, v20, 63")
        A(f"v_mov_b32 v22, 0x3acccccd")
        A("v_mul_f32 v22, s14, v22")
        A("v_cvt_pk_bf16_f32 v23, v21, v22")
        A("v_lshlrev_b32 v21, 16, v23")
        A("v_and_b32 v22, 0xffff0000, v23")
        A("v_add_f32 v22, 0x3727c5ac, v22")
        A("v_cvt_pk_bf16_f32 v22, v22, v22")
        A("v_and_b32 v22, 0xffff0000, v22")
        A("v_sqrt_f32 v22, v22")
        A("v_cvt_pk_bf16_f32 v22, v22, v22")
        A("v_and_b32 v22, 0xffff0000, v22")
        A("v_rcp_f32 v23, v22")
        for i in range(5):
            a, b = 10 + 2*i, 11 + 2*i
            A(f"v_sub_f32 v{a}, v{a}, v21")
            A(f"v_sub_f32 v{b}, v{b}, v21")
            A(f"v_cvt_pk_bf16_f32 v24, v{a}, v{b}")
            A(f"v_lshlrev_b32 v{a}, 16, v24")
            A(f"v_and_b32 v{b}, 0xffff0000, v24")
            A(f"v_mul_f32 v25, v{a}, v23")
            A(f"v_mul_f32 v26, v{b}, v23")
            A(f"v_fma_f32 v27, -v25, v22, v{a}")
            A(f"v_fma_f32 v28, -v26, v22, v{b}")
            A(f"v_fmac_f32 v25, v27, v23")
            A(f"v_fmac_f32 v26, v28, v23")
            A(f"v_cvt_pk_bf16_f32 v{4+i}, v25, v26")
        A("v_lshlrev_b32 v9, 2, v0")
        A(f"ds_write2st64_b32 v9, v4, v5 offset0:{xn_off//256} offset1:{xn_off//256+1}")
        A(f"ds_write2st64_b32 v9, v6, v7 offset0:{xn_off//256+2} offset1:{xn_off//256+3}")
        A(f"ds_write_b32 v9, v8 offset:{xn_off+1024}")

    def poll_loop(self, issue, check_regs, tmp, sc="s14"):
        A = self.A
        l0, l1 = self.L("pl"), self.L("pld")
        A(f"s_mov_b32 {sc}, {SPIN_GLB}")
        A(f"{l0}:")
        issue()
        A("s_waitcnt vmcnt(0)")
        regs = list(check_regs)
        if len(regs) == 1:
            A(f"v_cmp_eq_u32 vcc, s69, v{regs[0]}")
        else:
            first = True
            cur = None
            i = 0
            if len(regs) == 2:
                A(f"v_min_u32 v{tmp}, v{regs[0]}, v{regs[1]}")
            else:
                A(f"v_min3_u32 v{tmp}, v{regs[0]}, v{regs[1]}, v{regs[2]}")
                i = 3
                while i < len(regs):
                    if i + 1 < len(regs):
                        A(f"v_min3_u32 v{tmp}, v{tmp}, v{regs[i]}, v{regs[i+1]}"); i += 2
                    else:
                        A(f"v_min_u32 v{tmp}, v{tmp}, v{regs[i]}"); i += 1
            A(f"v_cmp_eq_u32 vcc, s69, v{tmp}")
        A("s_nop 1")
        A("s_cmp_eq_u64 vcc, -1")
        A(f"s_cbranch_scc1 {l1}")
        A(f"s_sub_u32 {sc}, {sc}, 1")
        A(f"s_cmp_lg_u32 {sc}, 0")
        A(f"s_cbranch_scc1 {l0}")
        A(f"{l1}:")

    def prologue(self):
        A = self.A
        A("s_cmp_ge_u32 s2, 256")
        A("s_cbranch_scc1 L_end")
        if self.stamps:
            A("s_memrealtime s[70:71]")
        A("s_load_dwordx16 s[16:31], s[0:1], 0")
        A("s_load_dwordx8 s[32:39], s[0:1], 64")
        A("v_lshrrev_b32 v1, 6, v0")
        A("v_and_b32 v0, 63, v0")
        A("s_and_b32 s4, s2, 7")
        A("v_readfirstlane_b32 s3, v1")
        if self.mapping == "xcd":
            A("s_lshr_b32 s5, s2, 3")
            A("s_and_b32 s6, s5, 3")
            A("s_lshl_b32 s4, s4, 2")
            A("s_add_u32 s4, s4, s6")
            A("s_lshr_b32 s5, s5, 2")
        else:
            A("s_mov_b32 s5, s4")
            A("s_lshr_b32 s4, s2, 3")
        A("s_lshl_b32 s6, s4, 3")
        A("s_add_u32 s6, s6, s5")
        A(f"s_mov_b32 s69, {TAG:#x}")
        A("s_cmp_ge_u32 s3, 8")
        A("s_cbranch_scc1 L_aux")

    def streaming(self):
        A = self.A
        D, N1 = self.D, self.N1
        A("s_lshl_b32 s7, s4, 21")
        A("s_lshl_b32 s8, s5, 18")
        A("s_add_u32 s7, s7, s8")
        A("s_lshl_b32 s8, s3, 10")
        A("s_add_u32 s7, s7, s8")
        A("v_lshlrev_b32 v1, 4, v0")
        A("v_add_u32 v1, s7, v1")
        A("s_mov_b32 s42, 0x4000000"); A("s_mov_b32 s43, 0x20000")
        A("s_mov_b32 s46, 0x4000000"); A("s_mov_b32 s47, 0x20000")
        A("s_mov_b32 s7, 0")
        A("s_waitcnt lgkmcnt(0)")
        A("s_mov_b32 s40, s18"); A("s_mov_b32 s41, s19")
        loads = [("K", j) for j in range(32)] + [("V", j) for j in range(32)] + [("W", j) for j in range(6)]
        NL = len(loads)
        st = dict(issued=0, arrived=-1)
        consumed = set()

        def slot(i): return RING + (i % 32) * 4

        def issue(i):
            kind, j = loads[i]
            r = slot(i)
            if i >= 32: assert (i - 32) in consumed, f"slot for load {i} not free"
            if kind in "KV":
                srd = "s[40:43]" if kind == "K" else "s[44:47]"
                if kind == "V" and j == 0:
                    A("s_mov_b32 s7, 0")
                A(f"buffer_load_dwordx4 v[{r}:{r+3}], v1, {srd}, s7 offen nt")
                if j < 31:
                    A("s_add_u32 s7, s7, 0x2000")
            else:
                if j < 2:
                    A(f"buffer_load_dwordx4 v[{r}:{r+3}], v3, s[52:55], 0 offen offset:{j*1280} nt")
                else:
                    A(f"buffer_load_dwordx4 v[{r}:{r+3}], v2, s[48:51], 0 offen offset:{(j-2)*1280} nt")
            st["issued"] += 1

        def need(i):
            if st["arrived"] >= i: return
            A(f"s_waitcnt vmcnt({st['issued'] - 1 - i})")
            st["arrived"] = i

        def kgroup(p):
            rs = [slot(4*p + u) for u in range(4)]
            for k in range(4):
                for u in range(4):
                    c = "0" if k == 0 else f"v{26+u}"
                    A(f"v_dot2_f32_bf16 v{26+u}, v{rs[u]+k}, v{4+k}, {c}")
            A("v_add_f32_dpp v30, v26, v26 row_ror:8 row_mask:0xf bank_mask:0x3")
            A("v_add_f32_dpp v31, v28, v28 row_ror:8 row_mask:0xf bank_mask:0x3")
            A("v_add_f32_dpp v30, v27, v27 row_ror:8 row_mask:0xf bank_mask:0xc")
            A("v_add_f32_dpp v31, v29, v29 row_ror:8 row_mask:0xf bank_mask:0xc")
            A("v_add_f32_dpp v32, v30, v30 row_half_mirror row_mask:0xf bank_mask:0x5")
            A("v_add_f32_dpp v32, v31, v31 row_half_mirror row_mask:0xf bank_mask:0xa")
            A("v_add_f32_dpp v32, v32, v32 quad_perm:[1,0,3,2] row_mask:0xf bank_mask:0xf")
            S = 24 + (p >> 2)
            if (p & 3) == 0:
                A(f"v_add_f32_dpp v{S}, v32, v32 quad_perm:[2,3,0,1] row_mask:0xf bank_mask:0xf")
            else:
                A(f"v_add_f32_dpp v32, v32, v32 quad_perm:[2,3,0,1] row_mask:0xf bank_mask:0xf")
                m = 8 + 2 * ((p & 3) - 1)
                A(f"v_cndmask_b32_e64 v{S}, v{S}, v32, s[{m}:{m+1}]")
            for u in range(4): consumed.add(4*p + u)

        def softmax():
            A("v_cvt_pk_bf16_f32 v26, v24, v25")
            A("v_lshlrev_b32 v24, 16, v26")
            A("v_and_b32 v25, 0xffff0000, v26")
            A(f"v_mul_f32 v24, {SCALE:#x}, v24")
            A(f"v_mul_f32 v25, {SCALE:#x}, v25")
            A("v_cvt_pk_bf16_f32 v26, v24, v25")
            A("v_lshlrev_b32 v24, 16, v26")
            A("v_and_b32 v25, 0xffff0000, v26")
            A("v_max_f32 v27, v24, v25")
            self.red64_lane63("v_max_f32", 27)
            A("v_readlane_b32 s60, v27, 63")
            A("v_subrev_f32 v24, s60, v24")
            A("v_subrev_f32 v25, s60, v25")
            A(f"v_mul_f32 v24, {LOG2E:#x}, v24")
            A(f"v_mul_f32 v25, {LOG2E:#x}, v25")
            A("v_exp_f32 v24, v24")
            A("v_exp_f32 v25, v25")
            A("v_add_f32 v27, v24, v25")
            A("v_cvt_pk_bf16_f32 v24, v24, v24")
            A("v_cvt_pk_bf16_f32 v25, v25, v25")
            self.red64_lane63("v_add_f32", 27)
            A("v_readlane_b32 s61, v27, 63")
            A("v_mov_b32 v28, s60")
            A("v_mov_b32 v29, s61")
            A("s_lshl_b32 s14, s3, 3")
            A("v_mov_b32 v30, s14")
            A("s_lshl_b32 s14, s3, 2")
            A("v_mov_b32 v31, s14")
            A("v_mov_b32 v32, 1")
            A("s_mov_b64 exec, 1")
            A(f"ds_write_b64 v30, v[28:29] offset:{ML}")
            A(f"ds_write_b32 v31, v32 offset:{MLF}")
            A("s_mov_b64 exec, -1")
            self.stamp(3)

        def tile_of(j):
            p = (j >> 2) & 3; u = j & 3
            q = [0, 2, 1, 3][u]
            return 24 + (j >> 4), 4 * q + p

        def buildA(j):
            P, c = tile_of(j)
            a = 12 + (j & 1) * 4
            for r in range(4):
                A(f"v_and_b32_dpp v{a+r}, v{P}, v{8+r} row_newbcast:{c} row_mask:0xf bank_mask:0xf")

        def vtile(j):
            a = 12 + (j & 1) * 4
            r = slot(32 + j)
            c = "0" if j == 0 else "v[20:23]"
            A(f"v_mfma_f32_16x16x32_bf16 v[20:23], v[{a}:{a+3}], v[{r}:{r+3}], {c}")
            consumed.add(32 + j)
            if j + 1 < 32: buildA(j + 1)

        def gml():
            self.spin_lds(GFLAG, 32, 39)
            A(f"ds_read_b64 v[36:37], v39 offset:{GML}")
            A("s_waitcnt lgkmcnt(0)")
            A("v_sub_f32 v35, s60, v36")
            A(f"v_mul_f32 v35, {LOG2E:#x}, v35")
            A("v_exp_f32 v35, v35")
            A("v_mul_f32 v35, v35, v37")

        tasks = [("kg", p, 4*p + 3) for p in range(8)] + [("sm", 0, 31)]
        for j in range(32):
            if j == self.gmlpos: tasks.append(("gml", 0, -1))
            tasks.append(("v", j, 32 + j))

        def run(t):
            kind, x, nd = t
            if kind == "kg": kgroup(x)
            elif kind == "sm":
                softmax(); buildA(0)
            elif kind == "gml": gml()
            else: vtile(x)

        for i in range(D): issue(i)
        A("s_mov_b32 s44, s20"); A("s_mov_b32 s45, s21")
        self.srd(48, 24, 4096 * 640 * 2)
        self.srd(52, 32, 1728 * 640 * 2)
        self.srd(56, 38, WS_SIZE)
        A("s_barrier")
        self.masks(8, 26, 27)
        A("v_mov_b32 v39, 0")
        for p, val in ((8, 0x22222222), (10, 0x44444444), (12, 0x88888888)):
            A(f"s_mov_b32 s{p}, {val:#x}"); A(f"s_mov_b32 s{p+1}, {val:#x}")
        A("v_lshrrev_b32 v26, 4, v0")
        A("v_and_b32 v27, 15, v0")
        A("s_mul_i32 s14, s5, 160")
        A("v_lshlrev_b32 v28, 4, v27")
        A("v_add_u32 v28, s14, v28")
        A(f"v_mov_b32 v29, {OOB:#x}")
        A("v_cmp_gt_u32 vcc, 10, v27")
        A("v_cndmask_b32 v28, v29, v28, vcc")
        A("s_lshl_b32 s14, s4, 7"); A("s_lshl_b32 s15, s3, 4"); A("s_add_u32 s14, s14, s15")
        A("s_mul_i32 s14, s14, 1280")
        A("v_mul_u32_u24 v29, 5120, v26")
        A("v_add3_u32 v2, v28, v29, s14")
        A("s_lshl_b32 s14, s4, 6"); A("s_lshl_b32 s15, s3, 3"); A("s_add_u32 s14, s14, s15")
        A("s_mul_i32 s14, s14, 1280")
        A("v_mul_u32_u24 v29, 2560, v26")
        A("v_add3_u32 v3, v28, v29, s14")
        A("v_and_b32 v29, 1, v26")
        A("v_lshlrev_b32 v29, 4, v29")
        A("v_lshlrev_b32 v33, 5, v27")
        A("s_lshl_b32 s14, s3, 9")
        A("v_add3_u32 v33, v33, v29, s14")
        A("v_and_b32 v29, 7, v27")
        A("v_lshlrev_b32 v29, 10, v29")
        A("v_lshrrev_b32 v30, 3, v27")
        A("v_lshlrev_b32 v30, 4, v30")
        A("v_lshlrev_b32 v31, 5, v26")
        A("v_add3_u32 v34, v29, v30, v31")
        A("s_lshl_b32 s14, s4, 13"); A("s_lshl_b32 s15, s3, 7"); A("s_add_u32 s14, s14, s15")
        A(f"s_add_u32 s14, s14, {H1O:#x}")
        A("v_add_u32 v34, s14, v34")
        A("s_lshl_b32 s14, s3, 4")
        A("v_lshlrev_b32 v38, 2, v26")
        A("v_add_u32 v38, s14, v38")

        ti = 0
        qdone = False
        for i in range(D, NL):
            kind = loads[i][0]
            Dh = D if kind != "W" else self.DW
            while i >= 32 and (i - 32) not in consumed:
                t = tasks[ti]; need(t[2]); run(t); ti += 1
            if st["issued"] - (st["arrived"] + 1) >= Dh:
                need(i - Dh)
            issue(i)
            if i == N1 - 1:
                self.stamp(1)
                self.spin_lds(QFLAG, 32, 39)
                A("v_and_b32 v32, 15, v0")
                A("v_lshlrev_b32 v32, 4, v32")
                A(f"ds_read_b128 v[4:7], v32 offset:{QL}")
                A("s_waitcnt lgkmcnt(0)")
                self.stamp(2)
                qdone = True
            if qdone:
                budget = 2
                while ti < len(tasks) and budget > 0 and tasks[ti][2] <= st["arrived"]:
                    t = tasks[ti]; run(t); ti += 1
                    budget -= 2 if t[0] in ("kg", "sm") else 1
        while ti < len(tasks):
            t = tasks[ti]; need(t[2]); run(t); ti += 1
        for r in range(4):
            A(f"v_mul_f32 v{20+r}, v{20+r}, v35")
        A(f"ds_write_b128 v33, v[20:23] offset:{OL}")
        A("s_waitcnt lgkmcnt(0)")
        self.stamp(4)
        A("s_barrier")
        self.stamp(5)
        A("buffer_load_dwordx4 v[24:27], v34, s[56:59], 0 offen sc1")
        A(f"ds_read_b32 v36, v38 offset:{HL}")
        A("s_mov_b32 s14, 0x01000100"); A("s_mov_b32 s15, 0x03020302")
        A("s_waitcnt lgkmcnt(0)")
        A("v_perm_b32 v37, v36, v36, s14")
        A("v_perm_b32 v36, v36, v36, s15")
        for r in range(4): A(f"v_and_b32 v{12+r}, v37, v{8+r}")
        for r in range(4): A(f"v_and_b32 v{16+r}, v36, v{8+r}")
        w = lambda j: slot(64 + j)
        A("s_waitcnt vmcnt(5)")
        A(f"v_mfma_f32_16x16x32_bf16 v[20:23], v[12:15], v[{w(0)}:{w(0)+3}], 0")
        A(f"v_mfma_f32_16x16x32_bf16 v[20:23], v[16:19], v[{w(1)}:{w(1)+3}], v[20:23]")
        l0, l1, l2 = self.L("h1"), self.L("h1d"), self.L("h1c")
        A(f"s_mov_b32 s14, {SPIN_GLB}")
        A(f"s_branch {l2}")
        A(f"{l0}:")
        A("buffer_load_dwordx4 v[24:27], v34, s[56:59], 0 offen sc1")
        A(f"{l2}:")
        A("s_waitcnt vmcnt(0)")
        A("v_min_u32 v28, v25, v27")
        A("v_cmp_eq_u32 vcc, s69, v28")
        A("s_nop 1")
        A("s_cmp_eq_u64 vcc, -1")
        A(f"s_cbranch_scc1 {l1}")
        A("s_sub_u32 s14, s14, 1")
        A("s_cmp_lg_u32 s14, 0")
        A(f"s_cbranch_scc1 {l0}")
        A(f"{l1}:")
        self.stamp(6)
        for stp in ("quad_perm:[1,0,3,2]", "quad_perm:[2,3,0,1]", "row_half_mirror"):
            A(f"v_add_f32_dpp v24, v24, v24 {stp} row_mask:0xf bank_mask:0xf")
            A(f"v_add_f32_dpp v26, v26, v26 {stp} row_mask:0xf bank_mask:0xf")
        A("v_cvt_pk_bf16_f32 v24, v24, v24")
        A("v_cvt_pk_bf16_f32 v26, v26, v26")
        for t in range(4):
            src = 24 if (t & 1) == 0 else 26
            c = 0 if t < 2 else 8
            a = 12 + (t & 1) * 4
            for r in range(4):
                A(f"v_and_b32_dpp v{a+r}, v{src}, v{8+r} row_newbcast:{c} row_mask:0xf bank_mask:0xf")
            A(f"v_mfma_f32_16x16x32_bf16 v[20:23], v[{a}:{a+3}], v[{w(2+t)}:{w(2+t)+3}], v[20:23]")
        A(f"ds_write_b128 v33, v[20:23] offset:{YL}")
        A("s_waitcnt lgkmcnt(0)")
        A("s_barrier")
        self.stamp(7)
        if self.stamps:
            A("s_cmp_lg_u32 s3, 0")
            A("s_cbranch_scc1 L_end")
            if self.hstamps: self.hstamp_out([(0, 0), (2, 1), (3, 2), (4, 3)])
            else: self.write_stamps(2, 8)
        A("s_endpgm")

    def aux_common(self):
        A = self.A
        A("s_setprio 3")
        A("s_waitcnt lgkmcnt(0)")
        self.srd(40, 16, 1280)
        A("v_lshlrev_b32 v9, 2, v0")
        for i in range(5):
            A(f"buffer_load_dword v{4+i}, v9, s[40:43], 0 offen offset:{i*256}")
        self.srd(56, 38, WS_SIZE)
        self.srd(60, 36, 256)

    def aux0(self):
        A = self.A
        A("v_mov_b32 v30, 0"); A("v_mov_b32 v31, 0"); A("v_mov_b32 v32, 0"); A("v_mov_b32 v33, 0")
        A("v_lshlrev_b32 v34, 2, v0")
        A("s_mov_b64 exec, 0xffff")
        A(f"ds_write_b32 v34, v30 offset:{QFLAG}")
        A("s_mov_b64 exec, -1")
        A("s_lshl_b32 s7, s6, 10")
        A("v_lshlrev_b32 v35, 4, v0")
        A("v_add_u32 v35, s7, v35")
        A(f"s_mov_b32 s8, {H0F:#x}"); A(f"s_mov_b32 s9, {H1O:#x}")
        A("buffer_store_dwordx4 v[30:33], v35, s[56:59], 0 offen sc1")
        A("buffer_store_dwordx4 v[30:33], v35, s[56:59], s8 offen sc1")
        A("buffer_store_dwordx4 v[30:33], v35, s[56:59], s9 offen sc1")
        A("s_lshl_b32 s7, s6, 4"); A(f"s_add_u32 s7, s7, {H1ML:#x}")
        A(f"v_mov_b32 v36, {OOB:#x}")
        A("v_mov_b32 v37, s7")
        A("v_cmp_eq_u32 vcc, 0, v0")
        A("v_cndmask_b32 v36, v36, v37, vcc")
        A("buffer_store_dwordx4 v[30:33], v36, s[56:59], 0 offen sc1")
        A("s_mul_i32 s7, s5, 20"); A("s_lshl_b32 s7, s7, 10"); A("s_lshl_b32 s10, s4, 5"); A("s_add_u32 s7, s7, s10")
        A(f"s_add_u32 s7, s7, {H2:#x}")
        A("v_lshrrev_b32 v37, 1, v0"); A("v_lshlrev_b32 v37, 10, v37")
        A("v_and_b32 v38, 1, v0"); A("v_lshlrev_b32 v38, 4, v38")
        A("v_add3_u32 v37, v37, v38, s7")
        A(f"v_mov_b32 v38, {OOB:#x}")
        A("v_cmp_gt_u32 vcc, 40, v0")
        A("v_cndmask_b32 v37, v38, v37, vcc")
        A("buffer_store_dwordx4 v[30:33], v37, s[56:59], 0 offen sc1")
        A("s_waitcnt lgkmcnt(0)")
        A("s_barrier")
        self.srd(44, 22, 640 * 4096 * 2)
        A("v_lshrrev_b32 v38, 4, v0")
        A("v_mul_u32_u24 v39, 20, v38")
        A("s_mul_i32 s7, s5, 80")
        A("v_add_u32 v39, s7, v39")
        A("v_lshlrev_b32 v39, 13, v39")
        A("v_and_b32 v38, 15, v0"); A("v_lshlrev_b32 v38, 4, v38")
        A("s_lshl_b32 s7, s4, 8")
        A("v_add3_u32 v39, v39, v38, s7")
        A("s_mov_b32 s7, 0")
        for t in range(20):
            A(f"buffer_load_dwordx4 v[{40+4*t}:{43+4*t}], v39, s[44:47], s7 offen nt")
            if t < 19: A("s_add_u32 s7, s7, 0x2000")
        A("s_waitcnt vmcnt(25)")
        self.stamp(1)
        self.layernorm(XN0)
        A("s_waitcnt vmcnt(20)")
        self.stamp(2)
        A("v_mov_b32 v10, s6"); A("v_mov_b32 v11, 1")
        A("s_mov_b64 exec, 1")
        A("buffer_store_byte v11, v10, s[60:63], 0 offen sc1")
        A("s_mov_b64 exec, -1")
        A("v_lshrrev_b32 v20, 4, v0")
        A("v_mul_u32_u24 v20, 40, v20")
        A("s_mul_i32 s7, s5, 160")
        A("v_add_u32 v20, s7, v20")
        A("s_waitcnt lgkmcnt(0)")
        for i in range(5):
            A(f"ds_read_b64 v[{10+2*i}:{11+2*i}], v20 offset:{XN0+8*i}")
        self.masks(4, 21, 22)
        A("s_mov_b32 s8, 0x01000100"); A("s_mov_b32 s9, 0x03020302")
        A("s_waitcnt lgkmcnt(0)")
        for t in range(20):
            a = 24 + (t & 1) * 4
            A(f"v_perm_b32 v21, v{10 + t//2}, v{10 + t//2}, s{8 + (t & 1)}")
            for r in range(4): A(f"v_and_b32 v{a+r}, v21, v{4+r}")
            A(f"s_waitcnt vmcnt({19 - t + 1})")
            c = "0" if t == 0 else "v[120:123]"
            A(f"v_mfma_f32_16x16x32_bf16 v[120:123], v[{a}:{a+3}], v[{40+4*t}:{43+4*t}], {c}")
        A("s_mov_b32 s8, -1"); A("s_mov_b32 s9, 0")
        A("v_and_b32 v20, 15, v0"); A("v_lshlrev_b32 v20, 6, v20")
        A("v_bfe_u32 v21, v0, 4, 1"); A("v_lshlrev_b32 v21, 5, v21")
        A("v_lshrrev_b32 v22, 5, v0"); A("v_lshlrev_b32 v22, 4, v22")
        A("v_add3_u32 v20, v20, v21, v22")
        A("s_lshl_b32 s7, s6, 10")
        A("v_add_u32 v20, s7, v20")
        A("v_cndmask_b32_e64 v24, v122, v120, s[8:9]")
        A("v_mov_b32 v25, s69")
        A("v_cndmask_b32_e64 v26, v123, v121, s[8:9]")
        A("v_mov_b32 v27, s69")
        A("buffer_store_dwordx4 v[24:27], v20, s[56:59], 0 offen sc1")
        self.stamp(3)
        A("s_lshl_b32 s7, s4, 3")
        A("v_mov_b32 v20, s7")
        l0, l1 = self.L("gf"), self.L("gfd")
        A(f"s_mov_b32 s14, {SPIN_GLB}")
        A(f"{l0}:")
        A("buffer_load_dwordx2 v[22:23], v20, s[60:63], 0 offen sc1")
        A("s_waitcnt vmcnt(0)")
        A("v_and_b32 v22, v22, v23")
        A("v_cmp_eq_u32 vcc, 0x01010101, v22")
        A("s_nop 1")
        A("s_cmp_eq_u64 vcc, -1")
        A(f"s_cbranch_scc1 {l1}")
        A("s_sub_u32 s14, s14, 1"); A("s_cmp_lg_u32 s14, 0"); A(f"s_cbranch_scc1 {l0}")
        A(f"{l1}:")
        self.stamp(4)
        A("s_lshl_b32 s7, s4, 13")
        A("v_lshlrev_b32 v20, 4, v0")
        A("v_add_u32 v20, s7, v20")
        A("v_add_u32 v21, 0x1000, v20")
        def issue():
            for sp in range(8):
                A(f"buffer_load_dwordx4 v[{40+4*sp}:{43+4*sp}], v{20 + (sp >> 2)}, s[56:59], 0 offen offset:{(sp & 3)*1024} sc1")
        self.poll_loop(issue, [41 + 2*i for i in range(16)], 22)
        for sp in range(1, 8):
            A(f"v_add_f32 v40, v40, v{40+4*sp}")
            A(f"v_add_f32 v42, v42, v{42+4*sp}")
        A("v_cvt_pk_bf16_f32 v40, v40, v42")
        A("v_lshlrev_b32 v21, 2, v0")
        A(f"ds_write_b32 v21, v40 offset:{QL}")
        A("v_mov_b32 v22, 1"); A("v_mov_b32 v23, 0")
        A("s_waitcnt lgkmcnt(0)")
        A("s_mov_b64 exec, 1")
        A(f"ds_write_b32 v23, v22 offset:{QFLAG}")
        A("s_mov_b64 exec, -1")
        self.stamp(5)
        A("v_and_b32 v20, 7, v0")
        A("v_lshlrev_b32 v21, 2, v20")
        A("v_lshlrev_b32 v20, 3, v20")
        l0, l1 = self.L("ml"), self.L("mld")
        A(f"s_mov_b32 s14, {SPIN_LDS*4}")
        A(f"{l0}:")
        A(f"ds_read_b32 v24, v21 offset:{MLF}")
        A(f"ds_read_b64 v[26:27], v20 offset:{ML}")
        A("s_waitcnt lgkmcnt(0)")
        A("v_cmp_ne_u32 vcc, 0, v24")
        A("s_nop 1")
        A("s_cmp_eq_u64 vcc, -1")
        A(f"s_cbranch_scc1 {l1}")
        A("s_sub_u32 s14, s14, 1"); A("s_cmp_lg_u32 s14, 0"); A(f"s_cbranch_scc1 {l0}")
        A(f"{l1}:")
        self.stamp(6)
        A("v_mov_b32 v28, v26")
        self.red8("v_max_f32", 28)
        A("v_sub_f32 v26, v26, v28")
        A(f"v_mul_f32 v26, {LOG2E:#x}, v26")
        A("v_exp_f32 v26, v26")
        A("v_mul_f32 v30, v26, v27")
        self.red8("v_add_f32", 30)
        A("v_mov_b32 v29, s69"); A("v_mov_b32 v31, s69")
        A("buffer_store_dwordx4 v[28:31], v36, s[56:59], 0 offen sc1")
        A("s_lshl_b32 s7, s4, 7"); A(f"s_add_u32 s7, s7, {H1ML:#x}")
        A("v_lshlrev_b32 v21, 1, v20")
        A("v_add_u32 v21, s7, v21")
        def issue2():
            A("buffer_load_dwordx4 v[24:27], v21, s[56:59], 0 offen sc1")
        self.poll_loop(issue2, [25, 27], 22)
        A("v_mov_b32 v28, v24")
        self.red8("v_max_f32", 28)
        A("v_sub_f32 v24, v24, v28")
        A(f"v_mul_f32 v24, {LOG2E:#x}, v24")
        A("v_exp_f32 v24, v24")
        A("v_mul_f32 v29, v24, v26")
        self.red8("v_add_f32", 29)
        A("v_rcp_f32 v30, v29")
        A("v_fma_f32 v31, -v29, v30, 1.0")
        A("v_fma_f32 v29, v31, v30, v30")
        A("v_mov_b32 v22, 1")
        A("s_mov_b64 exec, 1")
        A(f"ds_write_b64 v23, v[28:29] offset:{GML}")
        A(f"ds_write_b32 v23, v22 offset:{GFLAG}")
        A("s_mov_b64 exec, -1")
        self.stamp(7)
        A("v_lshlrev_b32 v20, 3, v0")
        A("v_mov_b32 v41, s69"); A("v_mov_b32 v43, s69")
        A("s_waitcnt lgkmcnt(0)")
        A("s_barrier")
        for wv in range(8):
            A(f"ds_read_b64 v[{44+2*wv}:{45+2*wv}], v20 offset:{OL + wv*512}")
        self._sum8(44, 40, 42)
        A(f"s_mov_b32 s9, {H1O:#x}")
        A("buffer_store_dwordx4 v[40:43], v35, s[56:59], s9 offen sc1")
        self.stamp(8)
        A("s_barrier")
        for wv in range(8):
            A(f"ds_read_b64 v[{44+2*wv}:{45+2*wv}], v20 offset:{YL + wv*512}")
        A("v_mov_b32 v65, s69"); A("v_mov_b32 v67, s69")
        self._sum8(44, 64, 66)
        A("buffer_store_dwordx4 v[64:67], v37, s[56:59], 0 offen sc1")
        self.stamp(9)
        if self.hstamps:
            self.hstamp_out([(1, 4), (5, 5), (9, 6)])
        elif self.stamps:
            A("s_getreg_b32 s14, hwreg(HW_REG_XCC_ID)")
            A("s_getreg_b32 s15, hwreg(HW_REG_HW_ID)")
            A("s_waitcnt lgkmcnt(0)")
            A("s_mov_b64 exec, 1")
            A("s_lshl_b32 s68, s2, 8"); A(f"s_add_u32 s68, s68, {STAMP}")
            A("v_mov_b32 v4, s68"); A("v_mov_b32 v8, s14"); A("v_mov_b32 v9, 0"); A("v_mov_b32 v10, s15"); A("v_mov_b32 v11, 0")
            A("buffer_store_dwordx4 v[8:11], v4, s[56:59], 0 offen")
            A("s_waitcnt vmcnt(0)")
            A("s_mov_b64 exec, -1")
            for k in range(1, 10):
                A(f"s_mov_b32 s{70+2*(k-1)}, s{70+2*k}"); A(f"s_mov_b32 s{71+2*(k-1)}, s{71+2*k}")
            self.write_stamps(10, 9)
        A("s_endpgm")

    def _sum8(self, base, d0, d1):
        A = self.A
        A("s_waitcnt lgkmcnt(0)")
        for (x, y) in ((0, 1), (2, 3), (4, 5), (6, 7)):
            A(f"v_add_f32 v{base+2*x}, v{base+2*x}, v{base+2*y}")
            A(f"v_add_f32 v{base+2*x+1}, v{base+2*x+1}, v{base+2*y+1}")
        for (x, y) in ((0, 2), (4, 6)):
            A(f"v_add_f32 v{base+2*x}, v{base+2*x}, v{base+2*y}")
            A(f"v_add_f32 v{base+2*x+1}, v{base+2*x+1}, v{base+2*y+1}")
        A(f"v_add_f32 v{d0}, v{base}, v{base+8}")
        A(f"v_add_f32 v{d1}, v{base+1}, v{base+9}")

    def aux1(self):
        A = self.A
        A("s_barrier")
        self.srd(44, 28, 640 * 1728 * 2)
        self.srd(48, 30, 640 * 1728 * 2)
        A("v_lshrrev_b32 v38, 3, v0")
        A("v_mul_u32_u24 v39, 10, v38")
        A("s_mul_i32 s7, s5, 80")
        A("v_add_u32 v39, s7, v39")
        A("v_mul_u32_u24 v39, 3456, v39")
        A("v_and_b32 v38, 7, v0"); A("v_lshlrev_b32 v38, 4, v38")
        A("s_lshl_b32 s7, s4, 7")
        A("s_cmp_ge_u32 s4, 27")
        A(f"s_cselect_b32 s7, {OOB:#x}, s7")
        A("v_add3_u32 v39, v39, v38, s7")
        A("s_mov_b32 s7, 0")
        for t in range(10):
            A(f"buffer_load_dwordx4 v[{40+8*t}:{43+8*t}], v39, s[44:47], s7 offen nt")
            A(f"buffer_load_dwordx4 v[{44+8*t}:{47+8*t}], v39, s[48:51], s7 offen nt")
            if t < 9: A("s_add_u32 s7, s7, 3456")
        A("s_waitcnt vmcnt(20)")
        self.layernorm(XN1)
        A("v_lshrrev_b32 v20, 3, v0")
        A("v_mul_u32_u24 v20, 20, v20")
        A("s_mul_i32 s7, s5, 160")
        A("v_add_u32 v20, s7, v20")
        A("s_waitcnt lgkmcnt(0)")
        A(f"v_add_u32 v20, {XN1}, v20")
        A("ds_read2_b32 v[10:11], v20 offset0:0 offset1:1")
        A("ds_read2_b32 v[12:13], v20 offset0:2 offset1:3")
        A("ds_read_b32 v14, v20 offset:16")
        self.masks(4, 21, 22)
        A("s_mov_b32 s8, 0x01000100"); A("s_mov_b32 s9, 0x03020302")
        A("s_waitcnt lgkmcnt(0)")
        for t in range(10):
            a = 24 + (t & 1) * 4
            A(f"v_perm_b32 v21, v{10 + t//2}, v{10 + t//2}, s{8 + (t & 1)}")
            for r in range(4): A(f"v_and_b32 v{a+r}, v21, v{4+r}")
            A(f"s_waitcnt vmcnt({18 - 2*t})")
            c1 = "0" if t == 0 else "v[120:123]"
            c3 = "0" if t == 0 else "v[124:127]"
            A(f"v_mfma_f32_16x16x32_bf16 v[120:123], v[{a}:{a+3}], v[{40+8*t}:{43+8*t}], {c1}")
            A(f"v_mfma_f32_16x16x32_bf16 v[124:127], v[{a}:{a+3}], v[{44+8*t}:{47+8*t}], {c3}")
        A("v_lshrrev_b32 v20, 5, v0"); A("v_lshlrev_b32 v20, 8, v20")
        A("v_and_b32 v21, 7, v0"); A("v_lshlrev_b32 v21, 5, v21")
        A("v_bfe_u32 v22, v0, 4, 1"); A("v_lshlrev_b32 v22, 4, v22")
        A("v_add3_u32 v20, v20, v21, v22")
        A("s_mov_b32 exec_lo, 0x00ff00ff"); A("s_mov_b32 exec_hi, 0xff00ff00")
        A(f"ds_write_b128 v20, v[120:123] offset:{GU}")
        A(f"ds_write_b128 v20, v[124:127] offset:{GU+512}")
        A("s_mov_b64 exec, -1")
        A("v_lshrrev_b32 v20, 5, v0"); A("v_lshlrev_b32 v20, 9, v20")
        A("v_and_b32 v21, 31, v0"); A("v_lshlrev_b32 v21, 3, v21")
        A("v_add_u32 v20, v20, v21")
        A("s_waitcnt lgkmcnt(0)")
        A(f"ds_read_b64 v[24:25], v20 offset:{GU}")
        A(f"ds_read_b64 v[26:27], v20 offset:{GU+256}")
        A("s_waitcnt lgkmcnt(0)")
        A("v_add_f32 v28, v24, v26"); A("v_mov_b32 v29, s69")
        A("v_add_f32 v30, v25, v27"); A("v_mov_b32 v31, s69")
        A("v_mov_b32 v23, 0")
        self.spin_lds(QFLAG, 22, 23)
        A("s_lshl_b32 s7, s6, 10"); A(f"s_add_u32 s7, s7, {H0F:#x}")
        A("v_lshlrev_b32 v20, 4, v0")
        A("v_add_u32 v20, s7, v20")
        A("buffer_store_dwordx4 v[28:31], v20, s[56:59], 0 offen sc1")
        A("s_lshl_b32 s7, s4, 13"); A(f"s_add_u32 s7, s7, {H0F:#x}")
        A("v_lshlrev_b32 v20, 4, v0")
        A("v_add_u32 v20, s7, v20")
        A("v_add_u32 v21, 0x1000, v20")
        def issue():
            for sp in range(8):
                A(f"buffer_load_dwordx4 v[{40+4*sp}:{43+4*sp}], v{20 + (sp >> 2)}, s[56:59], 0 offen offset:{(sp & 3)*1024} sc1")
        self.poll_loop(issue, [41 + 2*i for i in range(16)], 22)
        for sp in range(1, 8):
            A(f"v_add_f32 v40, v40, v{40+4*sp}")
            A(f"v_add_f32 v42, v42, v{42+4*sp}")
        A("v_cvt_pk_bf16_f32 v40, v40, v42")
        A("v_lshlrev_b32 v44, 16, v40")
        A("v_and_b32 v45, 0xffff0000, v40")
        A("v_mov_b32 v46, v44"); A("v_mov_b32 v47, v45")
        A("v_permlane32_swap_b32 v46, v48")
        A("v_permlane32_swap_b32 v47, v49")
        for g, u in ((44, 48), (45, 49)):
            A(f"v_mul_f32 v50, {LOG2E ^ 0x80000000:#x}, v{g}")
            A("v_exp_f32 v50, v50")
            A("v_add_f32 v50, 1.0, v50")
            A("v_rcp_f32 v51, v50")
            A(f"v_mul_f32 v{g}, v{g}, v51")
        A("v_cvt_pk_bf16_f32 v50, v44, v45")
        A("v_lshlrev_b32 v44, 16, v50")
        A("v_and_b32 v45, 0xffff0000, v50")
        A("v_mul_f32 v44, v44, v48")
        A("v_mul_f32 v45, v45, v49")
        A("v_cvt_pk_bf16_f32 v50, v44, v45")
        A("v_lshlrev_b32 v21, 2, v0")
        A("s_mov_b32 exec_lo, -1"); A("s_mov_b32 exec_hi, 0")
        A(f"ds_write_b32 v21, v50 offset:{HL}")
        A("s_mov_b64 exec, -1")
        self.stamp(1)
        lskip = self.L("nored")
        A("s_cmp_ge_u32 s2, 160")
        A(f"s_cbranch_scc1 {lskip}")
        A("v_lshlrev_b32 v20, 2, v0")
        l0, l1 = self.L("af"), self.L("afd")
        A(f"s_mov_b32 s14, {SPIN_GLB}")
        A(f"{l0}:")
        A("buffer_load_dword v22, v20, s[60:63], 0 offen sc1")
        A("s_waitcnt vmcnt(0)")
        A("v_cmp_eq_u32 vcc, 0x01010101, v22")
        A("s_nop 1")
        A("s_cmp_eq_u64 vcc, -1")
        A(f"s_cbranch_scc1 {l1}")
        A("s_sub_u32 s14, s14, 1"); A("s_cmp_lg_u32 s14, 0"); A(f"s_cbranch_scc1 {l0}")
        A(f"{l1}:")
        A("s_lshl_b32 s7, s2, 3")
        A("v_mov_b32 v20, s7")
        A("buffer_load_dwordx2 v[30:31], v20, s[40:43], 0 offen")
        self.srd(64, 34, 1280)
        A(f"{lskip}:")
        self.stamp(2)
        A("s_waitcnt vmcnt(0) lgkmcnt(0)")
        A("s_barrier")
        A("s_barrier")
        lend = self.L("a1end")
        A("s_cmp_ge_u32 s2, 160")
        A(f"s_cbranch_scc1 {lend}")
        A("s_lshl_b32 s7, s2, 10"); A(f"s_add_u32 s7, s7, {H2:#x}")
        A("v_and_b32 v20, 31, v0"); A("v_lshlrev_b32 v20, 5, v20")
        A("v_lshrrev_b32 v21, 5, v0"); A("v_lshlrev_b32 v21, 4, v21")
        A("v_add3_u32 v20, v20, v21, s7")
        def issue2():
            A("buffer_load_dwordx4 v[24:27], v20, s[56:59], 0 offen sc1")
        self.poll_loop(issue2, [25, 27], 22)
        for n in (8, 4, 2, 1):
            A(f"v_add_f32_dpp v24, v24, v24 row_ror:{n} row_mask:0xf bank_mask:0xf")
            A(f"v_add_f32_dpp v26, v26, v26 row_ror:{n} row_mask:0xf bank_mask:0xf")
        A("v_add_f32_dpp v24, v24, v24 row_bcast:15 row_mask:0xa bank_mask:0xf")
        A("v_add_f32_dpp v26, v26, v26 row_bcast:15 row_mask:0xa bank_mask:0xf")
        A("v_lshlrev_b32 v32, 16, v30"); A("v_and_b32 v33, 0xffff0000, v30")
        A("v_lshlrev_b32 v34, 16, v31"); A("v_and_b32 v35, 0xffff0000, v31")
        A("v_readlane_b32 s8, v24, 31"); A("v_readlane_b32 s9, v26, 31")
        A("v_readlane_b32 s10, v24, 63"); A("v_readlane_b32 s11, v26, 63")
        A("v_add_f32 v32, s8, v32"); A("v_add_f32 v33, s9, v33")
        A("v_add_f32 v34, s10, v34"); A("v_add_f32 v35, s11, v35")
        A("v_cvt_pk_bf16_f32 v32, v32, v33")
        A("v_cvt_pk_bf16_f32 v33, v34, v35")
        A("s_lshl_b32 s7, s2, 3")
        A("v_mov_b32 v20, s7")
        A("s_mov_b64 exec, 1")
        A("buffer_store_dwordx2 v[32:33], v20, s[64:67], 0 offen")
        A("s_mov_b64 exec, -1")
        A(f"{lend}:")
        self.stamp(3)
        if self.hstamps:
            self.hstamp_out([(3, 7)])
        elif self.stamps:
            for k in range(1, 4):
                A(f"s_waitcnt lgkmcnt(0)")
                A(f"s_mov_b32 s{70+2*(k-1)}, s{70+2*k}"); A(f"s_mov_b32 s{71+2*(k-1)}, s{71+2*k}")
            self.write_stamps(19, 3)
        A("s_endpgm")

    def build(self):
        A = self.A
        A(f"; @launch grid=(256,1,1) block=(640,1,1) lds={LDS_SIZE}")
        A('.amdgcn_target "amdgcn-amd-amdhsa--gfx950"')
        A(".text"); A(f".globl {KN}"); A(".p2align 8"); A(f".type {KN},@function"); A(f"{KN}:")
        self.prologue()
        self.streaming()
        A("L_aux:")
        self.aux_common()
        A("s_cmp_eq_u32 s3, 9")
        A("s_cbranch_scc1 L_aux1")
        self.aux0()
        A("L_aux1:")
        self.aux1()
        A("L_end:")
        A("s_endpgm")
        nv = 168
        A('.section .rodata,"a"'); A(".p2align 6"); A(f".amdhsa_kernel {KN}")
        A(f"  .amdhsa_next_free_vgpr {nv}"); A("  .amdhsa_next_free_sgpr 102"); A(f"  .amdhsa_accum_offset {nv}")
        A("  .amdhsa_group_segment_fixed_size 0"); A("  .amdhsa_kernarg_size 96"); A("  .amdhsa_user_sgpr_count 2")
        A("  .amdhsa_user_sgpr_kernarg_segment_ptr 1"); A("  .amdhsa_system_sgpr_workgroup_id_x 1"); A(".end_amdhsa_kernel")
        A.lines = [l for l in A.lines if l is not None]
        return HDR + A.finish()


if __name__ == "__main__":
    ap = argparse.ArgumentParser()
    ap.add_argument("-o", default=f"cdna_kernels/{NAME}.s")
    ap.add_argument("--D", type=int, default=4)
    ap.add_argument("--N1", type=int, default=24)
    ap.add_argument("--DW", type=int, default=10)
    ap.add_argument("--gmlpos", type=int, default=24)
    ap.add_argument("--stamps", action="store_true")
    ap.add_argument("--map", default="xcd")
    ap.add_argument("--hstamps", action="store_true")
    a = ap.parse_args()
    g = G(D=a.D, N1=a.N1, DW=a.DW, stamps=a.stamps, gmlpos=a.gmlpos, mapping=a.map, hstamps=a.hstamps)
    open(a.o, "w").write(g.build())
    print("wrote", a.o)
```

```python
import sys, os, argparse
sys.path.insert(0, os.path.dirname(os.path.abspath(__file__)))
from asmlib import Asm

NAME = "parallel_sum__gqa_block_cached__glu_gated_swiglu__decode"
KN = NAME + "_kernel"
HDR = open(f"cdna_kernels/{NAME}.s.ref").read().split("; Override launch")[0]

H0Q, H0F, H1O, H1ML = 0x0, 0x40000, 0x80000, 0xC0000
GOFF = 0x100000
H2, EPOCH, STAMP = 0x1D0000, 0x1F8000, 0x200000
WS_SIZE = 0x400000
NLOC = 64
LCG_A, LCG_C = 0x41C64E6D, 0x3039
XN0, XN1, QL, HL = 0x000, 0x500, 0xA00, 0xB00
QFLAG, GFLAG, GML, TAGL, YCNT, MLF, ML = 0xB80, 0xB84, 0xB88, 0xB90, 0xB98, 0xBA0, 0xBC0
OL, YL, GU = 0xC00, 0x1C00, 0x2C00
LDS_SIZE = 0x3000
LOG2E = 0x3FB8AA3B
SCALE = 0x3DB504F3
OOB = 0x40000000
SPIN_LDS = 1 << 16
SPIN_GLB = 1 << 12
RING = 40


class G:
    def __init__(self, D=4, DV=None, N1=24, DW=10, stamps=False, gmlpos=24, mapping="xcd", exp="", hint=True, NS1=1, NS2=1, budget=2):
        self.exp = set(exp.split(",")) if exp else set()
        self.mapping = mapping
        self.A = Asm()
        self.D, self.N1, self.DW, self.stamps, self.gmlpos = D, N1, DW, stamps, gmlpos
        self.DV = DV if DV else D
        self.hint = hint
        self.NS1, self.NS2, self.budget = NS1, NS2, budget
        self.lbl = 0
        self.in_stream = False

    def L(self, base):
        self.lbl += 1
        return f"L_{base}_{self.lbl}"

    def kstamp(self, k):
        if self.stamps and "kst" in self.exp:
            self.A(f"s_memrealtime s[{70+2*k}:{71+2*k}]")

    def stamp(self, k):
        if self.in_stream and "kst" in self.exp: return
        if self.stamps:
            self.A(f"s_memrealtime s[{70+2*k}:{71+2*k}]")

    def write_stamps(self, first_slot, n, vt=4, k0=0):
        if not self.stamps: return
        A = self.A
        A("s_waitcnt lgkmcnt(0)")
        A("s_mov_b64 exec, 1")
        A(f"s_lshl_b32 s68, s2, 8")
        A(f"s_add_u32 s68, s68, {STAMP + first_slot*8}")
        A(f"v_mov_b32 v{vt}, s68")
        for k in range(n):
            A(f"v_mov_b32 v{vt+2}, s{70+2*(k+k0)}")
            A(f"v_mov_b32 v{vt+3}, s{71+2*(k+k0)}")
            A(f"buffer_store_dwordx2 v[{vt+2}:{vt+3}], v{vt}, s[56:59], 0 offen offset:{k*8}")
            A("s_waitcnt vmcnt(0)")
        A("s_mov_b64 exec, -1")

    def srd(self, base, lo, size):
        A = self.A
        A(f"s_mov_b32 s{base}, s{lo}"); A(f"s_mov_b32 s{base+1}, s{lo+1}")
        A(f"s_mov_b32 s{base+2}, {size:#x}"); A(f"s_mov_b32 s{base+3}, 0x20000")

    def spin_lds(self, off, vtmp, vzero, scnt="s14", stmp="s15"):
        A = self.A
        l0, l1 = self.L("sp"), self.L("spd")
        A(f"v_mov_b32 v{vzero}, 0")
        A(f"s_mov_b32 {scnt}, {SPIN_LDS}")
        A(f"{l0}:")
        A(f"ds_read_b32 v{vtmp}, v{vzero} offset:{off}")
        A("s_waitcnt lgkmcnt(0)")
        A(f"v_readfirstlane_b32 {stmp}, v{vtmp}")
        A("s_nop 0")
        A(f"s_cmp_lg_u32 {stmp}, 0")
        A(f"s_cbranch_scc1 {l1}")
        A(f"s_sub_u32 {scnt}, {scnt}, 1")
        A(f"s_cmp_lg_u32 {scnt}, 0")
        A(f"s_cbranch_scc1 {l0}")
        A(f"{l1}:")

    def red16(self, op, v):
        A = self.A
        for n in (8, 4, 2, 1):
            A(f"{op}_dpp v{v}, v{v}, v{v} row_ror:{n} row_mask:0xf bank_mask:0xf")

    def red64_lane63(self, op, v):
        A = self.A
        self.red16(op, v)
        A(f"{op}_dpp v{v}, v{v}, v{v} row_bcast:15 row_mask:0xa bank_mask:0xf")
        A(f"{op}_dpp v{v}, v{v}, v{v} row_bcast:31 row_mask:0xc bank_mask:0xf")

    def red8(self, op, v):
        A = self.A
        A(f"{op}_dpp v{v}, v{v}, v{v} quad_perm:[1,0,3,2] row_mask:0xf bank_mask:0xf")
        A(f"{op}_dpp v{v}, v{v}, v{v} quad_perm:[2,3,0,1] row_mask:0xf bank_mask:0xf")
        A(f"{op}_dpp v{v}, v{v}, v{v} row_half_mirror row_mask:0xf bank_mask:0xf")

    def masks(self, m0, t0, t1):
        A = self.A
        A(f"v_and_b32 v{t0}, 1, v0")
        A(f"v_lshlrev_b32 v{t0}, 4, v{t0}")
        A(f"v_mov_b32 v{t1}, 0xffff")
        A(f"v_lshlrev_b32 v{t0}, v{t0}, v{t1}")
        A(f"v_bfe_u32 v{t1}, v0, 1, 2")
        A(f"v_mov_b32 v{m0}, 1")
        A(f"v_lshlrev_b32 v{t1}, v{t1}, v{m0}")
        for r in range(4):
            A(f"v_bfe_i32 v{m0+r}, v{t1}, {r}, 1")
        for r in range(4):
            A(f"v_and_b32 v{m0+r}, v{m0+r}, v{t0}")

    def layernorm(self, xn_off):
        A = self.A
        for i in range(5):
            A(f"v_lshlrev_b32 v{10+2*i}, 16, v{4+i}")
            A(f"v_and_b32 v{11+2*i}, 0xffff0000, v{4+i}")
        A("v_add_f32 v20, v10, v11")
        for i in range(2, 10):
            A(f"v_add_f32 v20, v20, v{10+i}")
        self.red64_lane63("v_add_f32", 20)
        A("v_readlane_b32 s14, v20, 63")
        A(f"v_mov_b32 v21, 0x3acccccd")
        A("v_mul_f32 v21, s14, v21")
        A("v_sub_f32 v22, v10, v21")
        A("v_mul_f32 v20, v22, v22")
        for i in range(1, 10):
            A(f"v_sub_f32 v22, v{10+i}, v21")
            A("v_fmac_f32 v20, v22, v22")
        self.red64_lane63("v_add_f32", 20)
        A("v_readlane_b32 s14, v20, 63")
        A(f"v_mov_b32 v22, 0x3acccccd")
        A("v_mul_f32 v22, s14, v22")
        A("v_cvt_pk_bf16_f32 v23, v21, v22")
        A("v_lshlrev_b32 v21, 16, v23")
        A("v_and_b32 v22, 0xffff0000, v23")
        A("v_add_f32 v22, 0x3727c5ac, v22")
        A("v_cvt_pk_bf16_f32 v22, v22, v22")
        A("v_and_b32 v22, 0xffff0000, v22")
        A("v_sqrt_f32 v22, v22")
        A("v_cvt_pk_bf16_f32 v22, v22, v22")
        A("v_and_b32 v22, 0xffff0000, v22")
        A("v_rcp_f32 v23, v22")
        for i in range(5):
            a, b = 10 + 2*i, 11 + 2*i
            A(f"v_sub_f32 v{a}, v{a}, v21")
            A(f"v_sub_f32 v{b}, v{b}, v21")
            A(f"v_cvt_pk_bf16_f32 v24, v{a}, v{b}")
            A(f"v_lshlrev_b32 v{a}, 16, v24")
            A(f"v_and_b32 v{b}, 0xffff0000, v24")
            A(f"v_mul_f32 v25, v{a}, v23")
            A(f"v_mul_f32 v26, v{b}, v23")
            A(f"v_fma_f32 v27, -v25, v22, v{a}")
            A(f"v_fma_f32 v28, -v26, v22, v{b}")
            A(f"v_fmac_f32 v25, v27, v23")
            A(f"v_fmac_f32 v26, v28, v23")
            A(f"v_cvt_pk_bf16_f32 v{4+i}, v25, v26")
        A("v_lshlrev_b32 v9, 2, v0")
        A(f"ds_write2st64_b32 v9, v4, v5 offset0:{xn_off//256} offset1:{xn_off//256+1}")
        A(f"ds_write2st64_b32 v9, v6, v7 offset0:{xn_off//256+2} offset1:{xn_off//256+3}")
        A(f"ds_write_b32 v9, v8 offset:{xn_off+1024}")

    def check_tags(self, regs, tmp, tmp2):
        A = self.A
        if len(regs) == 2:
            A(f"v_cmp_eq_u32 vcc, s69, v{regs[0]}")
            A(f"v_cmp_eq_u32_e64 s[66:67], s69, v{regs[1]}")
            A("s_nop 1")
            A("s_and_b64 vcc, vcc, s[66:67]")
        else:
            for op, t in (("min", tmp), ("max", tmp2)):
                A(f"v_{op}3_u32 v{t}, v{regs[0]}, v{regs[1]}, v{regs[2]}")
                i = 3
                while i < len(regs):
                    if i + 1 < len(regs):
                        A(f"v_{op}3_u32 v{t}, v{t}, v{regs[i]}, v{regs[i+1]}"); i += 2
                    else:
                        A(f"v_{op}_u32 v{t}, v{t}, v{regs[i]}"); i += 1
            A(f"v_cmp_eq_u32 vcc, s69, v{tmp}")
            A(f"v_cmp_eq_u32_e64 s[66:67], s69, v{tmp2}")
            A("s_nop 1")
            A("s_and_b64 vcc, vcc, s[66:67]")
        A("s_cmp_eq_u64 vcc, -1")

    def spin_init(self, sc):
        A = self.A
        A("s_cmp_eq_u32 s90, 0")
        A(f"s_cselect_b32 {sc}, {NLOC}, {SPIN_GLB}")

    def spin_next(self, sc, lloop, ldone):
        A = self.A
        A(f"s_sub_u32 {sc}, {sc}, 1")
        A(f"s_cmp_lg_u32 {sc}, 0")
        A(f"s_cbranch_scc1 {lloop}")
        A("s_cmp_lg_u32 s90, 0")
        A(f"s_cbranch_scc1 {ldone}")
        A(f"s_mov_b32 s90, {GOFF:#x}")
        A(f"s_mov_b32 {sc}, {SPIN_GLB}")
        A(f"s_branch {lloop}")

    def poll_loop(self, issue, check_regs, tmp, tmp2, sc="s14"):
        A = self.A
        l0, l1 = self.L("pl"), self.L("pld")
        self.spin_init(sc)
        A(f"{l0}:")
        issue()
        A("s_waitcnt vmcnt(0)")
        self.check_tags(list(check_regs), tmp, tmp2)
        A(f"s_cbranch_scc1 {l1}")
        self.spin_next(sc, l0, l1)
        A(f"{l1}:")

    def gather8(self, base_const):
        A = self.A
        A("s_lshl_b32 s7, s4, 13")
        if base_const: A(f"s_add_u32 s7, s7, {base_const:#x}")
        A("v_lshlrev_b32 v20, 4, v0")
        A("v_add_u32 v20, s7, v20")
        A("v_add_u32 v21, 0x1000, v20")
        def issue():
            for sp in range(8):
                A(f"buffer_load_dwordx4 v[{40+4*sp}:{43+4*sp}], v{20 + (sp >> 2)}, s[56:59], s90 offen offset:{(sp & 3)*1024} sc1")
        self.poll_loop(issue, [41 + 2*i for i in range(16)], 22, 23)
        for sp in range(1, 8):
            A(f"v_add_f32 v40, v40, v{40+4*sp}")
            A(f"v_add_f32 v42, v42, v{42+4*sp}")

    def pub(self, regs, va, loc_soff, glob_soff):
        A = self.A
        A(f"buffer_store_dwordx4 v[{regs}:{regs+3}], v{va}, s[56:59], {loc_soff} offen")
        A(f"buffer_store_dwordx4 v[{regs}:{regs+3}], v{va}, s[56:59], {glob_soff} offen sc1")

    def get_tag(self, v):
        A = self.A
        A(f"v_readfirstlane_b32 s68, v{v}")
        A(f"s_mul_i32 s69, s68, {LCG_A:#x}")
        A(f"s_add_u32 s69, s69, {LCG_C:#x}")

    def prologue(self):
        A = self.A
        A("s_cmp_ge_u32 s2, 256")
        A("s_cbranch_scc1 L_end")
        if self.stamps:
            A("s_memrealtime s[70:71]")
        A("s_load_dwordx16 s[16:31], s[0:1], 0")
        A("s_load_dwordx8 s[32:39], s[0:1], 64")
        A("v_lshrrev_b32 v1, 6, v0")
        A("v_and_b32 v0, 63, v0")
        A("s_and_b32 s4, s2, 7")
        A("v_readfirstlane_b32 s3, v1")
        if self.mapping == "xcd":
            A("s_lshr_b32 s5, s2, 3")
            A("s_and_b32 s6, s5, 3")
            A("s_lshl_b32 s4, s4, 2")
            A("s_add_u32 s4, s4, s6")
            A("s_lshr_b32 s5, s5, 2")
        else:
            A("s_mov_b32 s5, s4")
            A("s_lshr_b32 s4, s2, 3")
        A("s_lshl_b32 s6, s4, 3")
        A("s_add_u32 s6, s6, s5")
        A("s_cmp_ge_u32 s3, 8")
        A("s_cbranch_scc1 L_aux")

    def streaming(self):
        A = self.A
        self.in_stream = True
        D, N1 = self.D, self.N1
        A("s_lshl_b32 s7, s4, 21")
        A("s_lshl_b32 s8, s5, 18")
        A("s_add_u32 s7, s7, s8")
        A("s_lshl_b32 s8, s3, 10")
        A("s_add_u32 s7, s7, s8")
        A("v_bfe_u32 v36, v0, 2, 2")
        A("v_lshlrev_b32 v36, 8, v36")
        A("v_lshrrev_b32 v2, 4, v0")
        A("v_lshlrev_b32 v2, 6, v2")
        A("v_and_b32 v3, 3, v0")
        A("v_lshlrev_b32 v3, 4, v3")
        A("v_add3_u32 v36, v36, v2, v3")
        A("v_add_u32 v36, s7, v36")
        A("v_lshlrev_b32 v1, 4, v0")
        A("v_add_u32 v1, s7, v1")
        A("s_mov_b32 s42, 0x4000000"); A("s_mov_b32 s43, 0x20000")
        A("s_mov_b32 s7, 0")
        A("s_waitcnt lgkmcnt(0)")
        A("s_mov_b32 s40, s18"); A("s_mov_b32 s41, s19")
        loads = [("K", j) for j in range(32)] + [("V", j) for j in range(32)] + [("W", j) for j in range(6)]
        NL = len(loads)
        st = dict(issued=0, arrived=-1)
        consumed = set()

        def slot(i): return RING + (i % 32) * 4

        def issue(i):
            kind, j = loads[i]
            r = slot(i)
            if i >= 32: assert (i - 32) in consumed, f"slot for load {i} not free"
            if kind in "KV":
                srd = "s[40:43]" if kind == "K" else "s[44:47]"
                va = "v36" if kind == "K" else "v1"
                if "knat" in self.exp: va = "v1"
                if kind == "V" and j == 0:
                    A("s_mov_b32 s7, 0")
                A(f"buffer_load_dwordx4 v[{r}:{r+3}], {va}, {srd}, s7 offen nt")
                if j < 31:
                    A("s_add_u32 s7, s7, 0x2000")
            else:
                if j < 2:
                    A(f"buffer_load_dwordx4 v[{r}:{r+3}], v3, s[52:55], 0 offen offset:{j*1280} nt")
                else:
                    A(f"buffer_load_dwordx4 v[{r}:{r+3}], v2, s[48:51], 0 offen offset:{(j-2)*1280} nt")
            st["issued"] += 1

        def need(i):
            if st["arrived"] >= i: return
            A(f"s_waitcnt vmcnt({st['issued'] - 1 - i})")
            st["arrived"] = i

        def kpost(p):
            acc = 20 if (p & 1) == 0 else 26
            A(f"v_cndmask_b32_e64 v30, v{acc}, v{acc+1}, s[8:9]")
            A(f"v_cndmask_b32_e64 v30, v30, v{acc+2}, s[10:11]")
            A(f"v_cndmask_b32_e64 v30, v30, v{acc+3}, s[12:13]")
            A("v_add_f32_dpp v30, v30, v30 quad_perm:[1,0,3,2] row_mask:0xf bank_mask:0xf")
            S = 24 + (p >> 2)
            if (p & 3) == 0:
                A(f"v_add_f32_dpp v{S}, v30, v30 quad_perm:[2,3,0,1] row_mask:0xf bank_mask:0xf")
            else:
                A(f"v_add_f32_dpp v30, v30, v30 quad_perm:[2,3,0,1] row_mask:0xf bank_mask:0xf")
                m = 8 + 2 * ((p & 3) - 1)
                A(f"v_cndmask_b32_e64 v{S}, v{S}, v30, s[{m}:{m+1}]")

        def kgroup(p):
            acc = 20 if (p & 1) == 0 else 26
            for t in range(4):
                r = slot(4*p + t)
                c = "0" if t == 0 else f"v[{acc}:{acc+3}]"
                A(f"v_mfma_f32_16x16x32_bf16 v[{acc}:{acc+3}], v[{r}:{r+3}], v[{4+4*t}:{7+4*t}], {c}")
                consumed.add(4*p + t)
            if p > 0: kpost(p - 1)

        def softmax():
            kpost(7)
            A("v_cvt_pk_bf16_f32 v26, v24, v25")
            A("v_lshlrev_b32 v24, 16, v26")
            A("v_and_b32 v25, 0xffff0000, v26")
            A(f"v_mul_f32 v24, {SCALE:#x}, v24")
            A(f"v_mul_f32 v25, {SCALE:#x}, v25")
            A("v_cvt_pk_bf16_f32 v26, v24, v25")
            A("v_lshlrev_b32 v24, 16, v26")
            A("v_and_b32 v25, 0xffff0000, v26")
            A("v_max_f32 v27, v24, v25")
            self.red64_lane63("v_max_f32", 27)
            A("v_readlane_b32 s60, v27, 63")
            A("v_subrev_f32 v24, s60, v24")
            A("v_subrev_f32 v25, s60, v25")
            A(f"v_mul_f32 v24, {LOG2E:#x}, v24")
            A(f"v_mul_f32 v25, {LOG2E:#x}, v25")
            A("v_exp_f32 v24, v24")
            A("v_exp_f32 v25, v25")
            A("s_lshl_b32 s14, s3, 3")
            A("v_mov_b32 v30, s14")
            A("v_add_f32 v27, v24, v25")
            A("v_cvt_pk_bf16_f32 v24, v24, v24")
            A("v_cvt_pk_bf16_f32 v25, v25, v25")
            self.red64_lane63("v_add_f32", 27)
            A("v_readlane_b32 s61, v27, 63")
            A("v_mov_b32 v28, s60")
            A("s_lshl_b32 s14, s3, 2")
            A("v_mov_b32 v31, s14")
            A("v_mov_b32 v29, s61")
            A("v_mov_b32 v27, 1")
            A("s_mov_b64 exec, 1")
            A(f"ds_write_b64 v30, v[28:29] offset:{ML}")
            A(f"ds_write_b32 v31, v27 offset:{MLF}")
            A("s_mov_b64 exec, -1")
            self.stamp(3)

        def tile_of(j):
            p = (j >> 2) & 3; t = j & 3
            return 24 + (j >> 4), 4 * t + p

        def buildA(j):
            P, c = tile_of(j)
            a = 12 + (j & 1) * 4
            for r in range(4):
                A(f"v_and_b32_dpp v{a+r}, v{P}, v{32+r} row_newbcast:{c} row_mask:0xf bank_mask:0xf")

        def vtile(j):
            a = 12 + (j & 1) * 4
            r = slot(32 + j)
            c = "0" if j == 0 else "v[20:23]"
            A(f"v_mfma_f32_16x16x32_bf16 v[20:23], v[{a}:{a+3}], v[{r}:{r+3}], {c}")
            consumed.add(32 + j)
            if j + 1 < 32: buildA(j + 1)

        def gml():
            self.spin_lds(GFLAG, 30, 31)
            A(f"ds_read_b64 v[28:29], v31 offset:{GML}")
            A("s_waitcnt lgkmcnt(0)")
            A("v_sub_f32 v36, s60, v28")
            A(f"v_mul_f32 v36, {LOG2E:#x}, v36")
            A("v_exp_f32 v36, v36")
            A("v_mul_f32 v36, v36, v29")

        tasks = [("kg", p, 4*p + 3) for p in range(8)] + [("sm", 0, 31)]
        for j in range(32):
            if j == self.gmlpos: tasks.append(("gml", 0, -1))
            tasks.append(("v", j, 32 + j))

        def run(t):
            kind, x, nd = t
            if kind == "kg": kgroup(x)
            elif kind == "sm":
                softmax(); buildA(0)
            elif kind == "gml": gml()
            else: vtile(x)

        for i in range(D): issue(i)
        A("s_mov_b32 s44, s20"); A("s_mov_b32 s45, s21")
        A("s_mov_b32 s46, 0x4000000"); A("s_mov_b32 s47, 0x20000")
        self.srd(48, 24, 4096 * 640 * 2)
        self.srd(52, 32, 1728 * 640 * 2)
        self.srd(56, 38, WS_SIZE)
        A("s_barrier")
        self.masks(32, 26, 27)
        for p, val in ((8, 0x22222222), (10, 0x44444444), (12, 0x88888888)):
            A(f"s_mov_b32 s{p}, {val:#x}"); A(f"s_mov_b32 s{p+1}, {val:#x}")
        A("v_lshrrev_b32 v26, 4, v0")
        A("v_and_b32 v27, 15, v0")
        A("s_mul_i32 s14, s5, 160")
        A("v_lshlrev_b32 v28, 4, v27")
        A("v_add_u32 v28, s14, v28")
        A(f"v_mov_b32 v29, {OOB:#x}")
        A("v_cmp_gt_u32 vcc, 10, v27")
        A("v_cndmask_b32 v28, v29, v28, vcc")
        A("s_lshl_b32 s14, s4, 7"); A("s_lshl_b32 s15, s3, 4"); A("s_add_u32 s14, s14, s15")
        A("s_mul_i32 s14, s14, 1280")
        A("v_mul_u32_u24 v29, 5120, v26")
        A("v_add3_u32 v2, v28, v29, s14")
        A("s_lshl_b32 s14, s4, 6"); A("s_lshl_b32 s15, s3, 3"); A("s_add_u32 s14, s14, s15")
        A("s_mul_i32 s14, s14, 1280")
        A("v_mul_u32_u24 v29, 2560, v26")
        A("v_add3_u32 v3, v28, v29, s14")
        if "nowo" in self.exp:
            A(f"v_mov_b32 v2, {OOB:#x}"); A(f"v_mov_b32 v3, {OOB:#x}")
        A("v_and_b32 v29, 1, v26")
        A("v_lshlrev_b32 v29, 4, v29")
        A("v_lshlrev_b32 v37, 5, v27")
        A("s_lshl_b32 s14, s3, 9")
        A("v_add3_u32 v37, v37, v29, s14")
        A("v_and_b32 v29, 7, v27")
        A("v_lshlrev_b32 v29, 10, v29")
        A("v_lshrrev_b32 v30, 3, v27")
        A("v_lshlrev_b32 v30, 4, v30")
        A("v_lshlrev_b32 v31, 5, v26")
        A("v_add3_u32 v38, v29, v30, v31")
        A("s_lshl_b32 s14, s4, 13"); A("s_lshl_b32 s15, s3, 7"); A("s_add_u32 s14, s14, s15")
        A(f"s_add_u32 s14, s14, {H1O:#x}")
        A("v_add_u32 v38, s14, v38")
        A("s_lshl_b32 s14, s3, 4")
        A("v_lshlrev_b32 v39, 2, v26")
        A("v_add_u32 v39, s14, v39")

        ti = 0
        qdone = False
        for i in range(D, NL):
            kind = loads[i][0]
            Dh = {"K": D, "V": self.DV, "W": self.DW}[kind]
            while i >= 32 and (i - 32) not in consumed:
                t = tasks[ti]; need(t[2]); run(t); ti += 1
            if st["issued"] - (st["arrived"] + 1) >= Dh:
                need(i - Dh)
            issue(i)
            kmap = {4: 1, 10: 2, 16: 3, 23: 4, 28: 5, 32: 6, 40: 7}
            if i in kmap: self.kstamp(kmap[i])
            if i == N1 - 1:
                self.stamp(1)
                self.spin_lds(QFLAG, 30, 31)
                A("v_lshrrev_b32 v30, 4, v0")
                A("v_lshlrev_b32 v30, 6, v30")
                A("v_and_b32 v29, 3, v0")
                A("v_lshlrev_b32 v29, 4, v29")
                A("v_add_u32 v30, v30, v29")
                A(f"ds_read_b128 v[26:29], v30 offset:{QL}")
                A(f"ds_read_b64 v[20:21], v31 offset:{TAGL}")
                for t, val in enumerate((0x000f000f, 0x00f000f0, 0x0f000f00, 0xf000f000)):
                    A(f"s_mov_b32 s{62 + 2*(t & 1)}, {val:#x}"); A(f"s_mov_b32 s{63 + 2*(t & 1)}, {val:#x}")
                    if t == 0: A("s_waitcnt lgkmcnt(0)")
                    m = 62 + 2*(t & 1)
                    for r in range(4):
                        A(f"v_cndmask_b32_e64 v{4+4*t+r}, 0, v{26+r}, s[{m}:{m+1}]")
                A("v_readfirstlane_b32 s69, v20")
                A("v_readfirstlane_b32 s90, v21")
                self.stamp(2)
                qdone = True
            if qdone:
                budget = self.budget
                while ti < len(tasks) and budget > 0 and tasks[ti][2] <= st["arrived"]:
                    t = tasks[ti]; run(t); ti += 1
                    budget -= 1
        while ti < len(tasks):
            t = tasks[ti]; need(t[2]); run(t); ti += 1
        for r in range(4):
            A(f"v_mul_f32 v{20+r}, v{20+r}, v36")
        A(f"ds_write_b128 v37, v[20:23] offset:{OL}")
        A("s_waitcnt lgkmcnt(0)")
        self.stamp(4)
        A("s_barrier")
        self.stamp(5)
        NS = self.NS1
        SET = [64 + 4*k for k in range(NS)]
        def poll1(k):
            A(f"buffer_load_dwordx4 v[{SET[k]}:{SET[k]+3}], v38, s[56:59], s90 offen sc1")
        for k in range(NS): poll1(k)
        A(f"ds_read_b32 v30, v39 offset:{HL}")
        A("s_mov_b32 s14, 0x01000100"); A("s_mov_b32 s15, 0x03020302")
        A("s_waitcnt lgkmcnt(0)")
        A("v_perm_b32 v31, v30, v30, s14")
        A("v_perm_b32 v30, v30, v30, s15")
        for r in range(4): A(f"v_and_b32 v{12+r}, v31, v{32+r}")
        for r in range(4): A(f"v_and_b32 v{16+r}, v30, v{32+r}")
        w = lambda j: slot(64 + j)
        A(f"s_waitcnt vmcnt({4 + NS})")
        A(f"v_mfma_f32_16x16x32_bf16 v[20:23], v[12:15], v[{w(0)}:{w(0)+3}], 0")
        A(f"v_mfma_f32_16x16x32_bf16 v[20:23], v[16:19], v[{w(1)}:{w(1)+3}], v[20:23]")
        l0, l1 = self.L("h1"), self.L("h1d")
        self.spin_init("s14")
        A(f"{l0}:")
        for k in range(NS):
            S = SET[k]
            A(f"s_waitcnt vmcnt({NS - 1})")
            A(f"v_cmp_eq_u32 vcc, s69, v{S+1}")
            A(f"v_cmp_eq_u32_e64 s[66:67], s69, v{S+3}")
            for n, stp in enumerate(("quad_perm:[1,0,3,2]", "quad_perm:[2,3,0,1]", "row_half_mirror")):
                a, b = (S, S + 2) if n == 0 else (24, 26)
                A(f"v_add_f32_dpp v24, v{a}, v{a} {stp} row_mask:0xf bank_mask:0xf")
                A(f"v_add_f32_dpp v26, v{b}, v{b} {stp} row_mask:0xf bank_mask:0xf")
            A("s_and_b64 vcc, vcc, s[66:67]")
            A("v_cvt_pk_bf16_f32 v24, v24, v24")
            A("v_cvt_pk_bf16_f32 v26, v26, v26")
            A("s_cmp_eq_u64 vcc, -1")
            A(f"s_cbranch_scc1 {l1}")
            poll1(k)
        self.spin_next("s14", l0, l1)
        A(f"{l1}:")
        self.stamp(6)
        for t in range(4):
            src = 24 if (t & 1) == 0 else 26
            c = 0 if t < 2 else 8
            a = 12 + (t & 1) * 4
            for r in range(4):
                A(f"v_and_b32_dpp v{a+r}, v{src}, v{32+r} row_newbcast:{c} row_mask:0xf bank_mask:0xf")
            A(f"v_mfma_f32_16x16x32_bf16 v[20:23], v[{a}:{a+3}], v[{w(2+t)}:{w(2+t)+3}], v[20:23]")
        A(f"ds_write_b128 v37, v[20:23] offset:{YL}")
        A("v_mov_b32 v30, 0"); A("v_mov_b32 v31, 1")
        A("s_mov_b64 exec, 1")
        A(f"ds_add_u32 v30, v31 offset:{YCNT}")
        A("s_mov_b64 exec, -1")
        A("s_waitcnt lgkmcnt(0)")
        self.stamp(7)
        if self.stamps and "wst" in self.exp:
            k = 4
            for kk in range(1, 8):
                if f"wst{kk}" in self.exp: k = kk
            A("s_waitcnt lgkmcnt(0)")
            A("s_mov_b64 exec, 1")
            A("s_lshl_b32 s68, s2, 8"); A("s_lshl_b32 s14, s3, 3"); A("s_add_u32 s68, s68, s14")
            A(f"s_add_u32 s68, s68, {STAMP + 16}")
            A("v_mov_b32 v4, s68")
            A(f"v_mov_b32 v6, s{70+2*k}"); A(f"v_mov_b32 v7, s{71+2*k}")
            A("buffer_store_dwordx2 v[6:7], v4, s[56:59], 0 offen")
            A("s_waitcnt vmcnt(0)")
        elif self.stamps:
            A("s_cmp_lg_u32 s3, 0")
            A("s_cbranch_scc1 L_end")
            self.write_stamps(2, 8)
        A("s_endpgm")

    def aux_common(self):
        A = self.A
        self.in_stream = False
        A("s_setprio 3")
        A("s_mov_b32 s90, 0")
        A(f"s_mov_b32 s91, {GOFF:#x}")
        A(f"v_mov_b32 v2, {EPOCH:#x}")
        A("v_lshlrev_b32 v9, 2, v0")
        A("s_mov_b32 s42, 0x500"); A("s_mov_b32 s43, 0x20000")
        A(f"s_mov_b32 s58, {WS_SIZE:#x}"); A("s_mov_b32 s59, 0x20000")
        A("s_waitcnt lgkmcnt(0)")
        A("s_mov_b32 s40, s16"); A("s_mov_b32 s41, s17")
        A("s_mov_b32 s56, s38"); A("s_mov_b32 s57, s39")
        for i in range(5):
            A(f"buffer_load_dword v{4+i}, v9, s[40:43], 0 offen offset:{i*256}")
        A("buffer_load_dword v3, v2, s[56:59], 0 offen")

    def aux0(self):
        A = self.A
        self.srd(44, 22, 640 * 4096 * 2)
        A("v_lshrrev_b32 v38, 4, v0")
        A("v_mul_u32_u24 v39, 20, v38")
        A("s_mul_i32 s7, s5, 80")
        A("v_add_u32 v39, s7, v39")
        A("v_lshlrev_b32 v39, 13, v39")
        A("v_and_b32 v38, 15, v0"); A("v_lshlrev_b32 v38, 4, v38")
        A("s_lshl_b32 s7, s4, 8")
        A("v_add3_u32 v39, v39, v38, s7")
        if "nowq" in self.exp: A(f"v_mov_b32 v39, {OOB:#x}")
        A("s_mov_b32 s7, 0")
        for t in range(20):
            A(f"buffer_load_dwordx4 v[{40+4*t}:{43+4*t}], v39, s[44:47], s7 offen nt")
            if t < 19: A("s_add_u32 s7, s7, 0x2000")
        A("v_mov_b32 v30, 0")
        A("v_lshlrev_b32 v34, 2, v0")
        A("s_mov_b64 exec, 0xffff")
        A(f"ds_write_b32 v34, v30 offset:{QFLAG}")
        A("s_mov_b64 exec, -1")
        A("s_waitcnt lgkmcnt(0)")
        A("s_barrier")
        A("s_lshl_b32 s7, s6, 10")
        A("v_lshlrev_b32 v35, 4, v0")
        A("v_add_u32 v35, s7, v35")
        A("s_lshl_b32 s7, s6, 4"); A(f"s_add_u32 s7, s7, {H1ML:#x}")
        A(f"v_mov_b32 v36, {OOB:#x}")
        A("v_mov_b32 v37, s7")
        A("v_cmp_eq_u32 vcc, 0, v0")
        A("v_cndmask_b32 v36, v36, v37, vcc")
        A("s_mul_i32 s7, s5, 20"); A("s_lshl_b32 s7, s7, 10"); A("s_lshl_b32 s10, s4, 5"); A("s_add_u32 s7, s7, s10")
        A(f"s_add_u32 s7, s7, {H2:#x}")
        A("v_lshrrev_b32 v37, 1, v0"); A("v_lshlrev_b32 v37, 10, v37")
        A("v_and_b32 v38, 1, v0"); A("v_lshlrev_b32 v38, 4, v38")
        A("v_add3_u32 v37, v37, v38, s7")
        A(f"v_mov_b32 v38, {OOB:#x}")
        A("v_cmp_gt_u32 vcc, 40, v0")
        A("v_cndmask_b32 v37, v38, v37, vcc")
        A("s_waitcnt vmcnt(20)")
        self.stamp(1)
        self.get_tag(3)
        NPW = 0
        self.layernorm(XN0)
        self.stamp(2)
        A("v_lshrrev_b32 v20, 4, v0")
        A("v_mul_u32_u24 v20, 40, v20")
        A("s_mul_i32 s7, s5, 160")
        A("v_add_u32 v20, s7, v20")
        A("s_waitcnt lgkmcnt(0)")
        for i in range(5):
            A(f"ds_read_b64 v[{10+2*i}:{11+2*i}], v20 offset:{XN0+8*i}")
        self.masks(4, 21, 22)
        A("s_mov_b32 s8, 0x01000100"); A("s_mov_b32 s9, 0x03020302")
        A("s_waitcnt lgkmcnt(0)")
        for t in range(20):
            a = 24 + (t & 1) * 4
            A(f"v_perm_b32 v21, v{10 + t//2}, v{10 + t//2}, s{8 + (t & 1)}")
            for r in range(4): A(f"v_and_b32 v{a+r}, v21, v{4+r}")
            A(f"s_waitcnt vmcnt({19 - t + NPW})")
            c = "0" if t == 0 else "v[120:123]"
            A(f"v_mfma_f32_16x16x32_bf16 v[120:123], v[{a}:{a+3}], v[{40+4*t}:{43+4*t}], {c}")
        A("s_mov_b32 s8, -1"); A("s_mov_b32 s9, 0")
        A("v_and_b32 v20, 15, v0"); A("v_lshlrev_b32 v20, 6, v20")
        A("v_bfe_u32 v21, v0, 4, 1"); A("v_lshlrev_b32 v21, 5, v21")
        A("v_lshrrev_b32 v22, 5, v0"); A("v_lshlrev_b32 v22, 4, v22")
        A("v_add3_u32 v20, v20, v21, v22")
        A("s_lshl_b32 s7, s6, 10")
        A("v_add_u32 v20, s7, v20")
        A("v_cndmask_b32_e64 v24, v122, v120, s[8:9]")
        A("v_mov_b32 v25, s69")
        A("v_cndmask_b32_e64 v26, v123, v121, s[8:9]")
        A("v_mov_b32 v27, s69")
        self.pub(24, 20, "0", "s91")
        self.stamp(3)
        self.gather8(H0Q)
        self.stamp(4)
        A("v_cvt_pk_bf16_f32 v40, v40, v42")
        A("v_lshlrev_b32 v21, 2, v0")
        A(f"ds_write_b32 v21, v40 offset:{QL}")
        A("v_mov_b32 v22, 1"); A("v_mov_b32 v23, 0"); A("v_mov_b32 v24, s69"); A("v_mov_b32 v25, s90")
        A("s_mov_b64 exec, 1")
        A(f"ds_write_b64 v23, v[24:25] offset:{TAGL}")
        A("s_waitcnt lgkmcnt(0)")
        A(f"ds_write_b32 v23, v22 offset:{QFLAG}")
        A("s_mov_b64 exec, -1")
        self.stamp(5)
        if "nopw" not in self.exp:
            A("s_xor_b32 s68, s69, 1")
            A(f"s_mov_b32 s93, {H1O:#x}")
            A("v_mov_b32 v28, 0"); A("v_mov_b32 v29, s68"); A("v_mov_b32 v30, 0"); A("v_mov_b32 v31, s68")
            A("buffer_store_dwordx4 v[28:31], v35, s[56:59], s93 offen")
            A("buffer_store_dwordx4 v[28:31], v36, s[56:59], 0 offen")
            A("s_waitcnt vmcnt(0)")
        A("v_and_b32 v20, 7, v0")
        A("v_lshlrev_b32 v21, 2, v20")
        A("v_lshlrev_b32 v20, 3, v20")
        l0, l1 = self.L("ml"), self.L("mld")
        A(f"s_mov_b32 s14, {SPIN_LDS*4}")
        A(f"{l0}:")
        A(f"ds_read_b32 v24, v21 offset:{MLF}")
        A(f"ds_read_b64 v[26:27], v20 offset:{ML}")
        A("s_waitcnt lgkmcnt(0)")
        A("v_cmp_ne_u32 vcc, 0, v24")
        A("s_nop 1")
        A("s_cmp_eq_u64 vcc, -1")
        A(f"s_cbranch_scc1 {l1}")
        A("s_sub_u32 s14, s14, 1"); A("s_cmp_lg_u32 s14, 0"); A(f"s_cbranch_scc1 {l0}")
        A(f"{l1}:")
        self.stamp(6)
        A("v_mov_b32 v28, v26")
        self.red8("v_max_f32", 28)
        A("v_sub_f32 v26, v26, v28")
        A(f"v_mul_f32 v26, {LOG2E:#x}, v26")
        A("v_exp_f32 v26, v26")
        A("v_mul_f32 v30, v26, v27")
        self.red8("v_add_f32", 30)
        A("v_mov_b32 v29, s69"); A("v_mov_b32 v31, s69")
        self.pub(28, 36, "0", "s91")
        A("s_lshl_b32 s7, s4, 7"); A(f"s_add_u32 s7, s7, {H1ML:#x}")
        A("v_lshlrev_b32 v21, 1, v20")
        A("v_add_u32 v21, s7, v21")
        def issue2():
            A("buffer_load_dwordx4 v[24:27], v21, s[56:59], s90 offen sc1")
        self.poll_loop(issue2, [25, 27], 22, 23)
        A("v_mov_b32 v28, v24")
        self.red8("v_max_f32", 28)
        A("v_sub_f32 v24, v24, v28")
        A(f"v_mul_f32 v24, {LOG2E:#x}, v24")
        A("v_exp_f32 v24, v24")
        A("v_mul_f32 v29, v24, v26")
        self.red8("v_add_f32", 29)
        A("v_rcp_f32 v30, v29")
        A("v_fma_f32 v31, -v29, v30, 1.0")
        A("v_fma_f32 v29, v31, v30, v30")
        A("v_mov_b32 v22, 1"); A("v_mov_b32 v23, 0")
        A("s_mov_b64 exec, 1")
        A(f"ds_write_b64 v23, v[28:29] offset:{GML}")
        A(f"ds_write_b32 v23, v22 offset:{GFLAG}")
        A("s_mov_b64 exec, -1")
        self.stamp(7)
        A("v_lshlrev_b32 v20, 3, v0")
        A("v_mov_b32 v41, s69"); A("v_mov_b32 v43, s69")
        A(f"s_mov_b32 s9, {H1O:#x}")
        A(f"s_mov_b32 s10, {H1O + GOFF:#x}")
        A("v_mov_b32 v65, s69"); A("v_mov_b32 v67, s69")
        A("v_mov_b32 v23, 0")
        A("s_waitcnt lgkmcnt(0)")
        A("s_barrier")
        for wv in range(8):
            A(f"ds_read_b64 v[{44+2*wv}:{45+2*wv}], v20 offset:{OL + wv*512}")
        self._sum8(44, 40, 42)
        self.pub(40, 35, "s9", "s10")
        self.stamp(8)
        l0, l1 = self.L("yw"), self.L("ywd")
        A(f"s_mov_b32 s14, {SPIN_LDS*4}")
        A(f"{l0}:")
        A(f"ds_read_b32 v24, v23 offset:{YCNT}")
        for wv in range(8):
            A(f"ds_read_b64 v[{44+2*wv}:{45+2*wv}], v20 offset:{YL + wv*512}")
        A("s_waitcnt lgkmcnt(8)")
        A("v_readfirstlane_b32 s15, v24")
        A("s_cmp_eq_u32 s15, 8")
        A(f"s_cbranch_scc1 {l1}")
        A("s_waitcnt lgkmcnt(0)")
        A("s_sub_u32 s14, s14, 1"); A("s_cmp_lg_u32 s14, 0"); A(f"s_cbranch_scc1 {l0}")
        A(f"{l1}:")
        self._sum8(44, 64, 66)
        A("buffer_store_dwordx4 v[64:67], v37, s[56:59], 0 offen sc1")
        self.stamp(9)
        if self.stamps:
            A("s_getreg_b32 s14, hwreg(HW_REG_XCC_ID)")
            A("s_getreg_b32 s15, hwreg(HW_REG_HW_ID)")
            A("s_waitcnt lgkmcnt(0)")
            A("s_mov_b64 exec, 1")
            A("s_lshl_b32 s68, s2, 8"); A(f"s_add_u32 s68, s68, {STAMP}")
            A("v_mov_b32 v4, s68"); A("v_mov_b32 v8, s14"); A("v_mov_b32 v9, 0"); A("v_mov_b32 v10, s15"); A("v_mov_b32 v11, 0")
            A("buffer_store_dwordx4 v[8:11], v4, s[56:59], 0 offen")
            A("s_waitcnt vmcnt(0)")
            A("s_mov_b64 exec, -1")
            self.write_stamps(10, 9, k0=0 if "wst" in self.exp else 1)
        A("s_endpgm")

    def _sum8(self, base, d0, d1):
        A = self.A
        A("s_waitcnt lgkmcnt(0)")
        for (x, y) in ((0, 1), (2, 3), (4, 5), (6, 7)):
            A(f"v_add_f32 v{base+2*x}, v{base+2*x}, v{base+2*y}")
            A(f"v_add_f32 v{base+2*x+1}, v{base+2*x+1}, v{base+2*y+1}")
        for (x, y) in ((0, 2), (4, 6)):
            A(f"v_add_f32 v{base+2*x}, v{base+2*x}, v{base+2*y}")
            A(f"v_add_f32 v{base+2*x+1}, v{base+2*x+1}, v{base+2*y+1}")
        A(f"v_add_f32 v{d0}, v{base}, v{base+8}")
        A(f"v_add_f32 v{d1}, v{base+1}, v{base+9}")

    def aux1(self):
        A = self.A
        self.srd(44, 28, 640 * 1728 * 2)
        self.srd(48, 30, 640 * 1728 * 2)
        A("v_lshrrev_b32 v38, 3, v0")
        A("v_mul_u32_u24 v39, 10, v38")
        A("s_mul_i32 s7, s5, 80")
        A("v_add_u32 v39, s7, v39")
        A("v_mul_u32_u24 v39, 3456, v39")
        A("v_and_b32 v38, 7, v0"); A("v_lshlrev_b32 v38, 4, v38")
        A("s_lshl_b32 s7, s4, 7")
        A("s_cmp_ge_u32 s4, 27")
        A(f"s_cselect_b32 s7, {OOB:#x}, s7")
        A("v_add3_u32 v39, v39, v38, s7")
        if "now13" in self.exp: A(f"v_mov_b32 v39, {OOB:#x}")
        A("s_barrier")
        A("s_waitcnt vmcnt(0)")
        self.get_tag(3)
        A("s_lshl_b32 s7, s6, 10"); A(f"s_add_u32 s7, s7, {H0F:#x}")
        A("v_lshlrev_b32 v37, 4, v0")
        A("v_add_u32 v37, s7, v37")
        self.layernorm(XN1)
        A("s_mov_b32 s7, 0")
        for t in range(10):
            A(f"buffer_load_dwordx4 v[{40+8*t}:{43+8*t}], v39, s[44:47], s7 offen nt")
            A(f"buffer_load_dwordx4 v[{44+8*t}:{47+8*t}], v39, s[48:51], s7 offen nt")
            if t < 9: A("s_add_u32 s7, s7, 3456")
        A("v_lshrrev_b32 v20, 3, v0")
        A("v_mul_u32_u24 v20, 20, v20")
        A("s_mul_i32 s7, s5, 160")
        A("v_add_u32 v20, s7, v20")
        A(f"v_add_u32 v20, {XN1}, v20")
        A("s_waitcnt lgkmcnt(0)")
        A("ds_read2_b32 v[10:11], v20 offset0:0 offset1:1")
        A("ds_read2_b32 v[12:13], v20 offset0:2 offset1:3")
        A("ds_read_b32 v14, v20 offset:16")
        self.masks(4, 21, 22)
        A("s_mov_b32 s8, 0x01000100"); A("s_mov_b32 s9, 0x03020302")
        A("s_waitcnt lgkmcnt(0)")
        for t in range(10):
            a = 24 + (t & 1) * 4
            A(f"v_perm_b32 v21, v{10 + t//2}, v{10 + t//2}, s{8 + (t & 1)}")
            for r in range(4): A(f"v_and_b32 v{a+r}, v21, v{4+r}")
            A(f"s_waitcnt vmcnt({18 - 2*t})")
            c1 = "0" if t == 0 else "v[120:123]"
            c3 = "0" if t == 0 else "v[124:127]"
            A(f"v_mfma_f32_16x16x32_bf16 v[120:123], v[{a}:{a+3}], v[{40+8*t}:{43+8*t}], {c1}")
            A(f"v_mfma_f32_16x16x32_bf16 v[124:127], v[{a}:{a+3}], v[{44+8*t}:{47+8*t}], {c3}")
        A("v_lshrrev_b32 v20, 5, v0"); A("v_lshlrev_b32 v20, 8, v20")
        A("v_and_b32 v21, 7, v0"); A("v_lshlrev_b32 v21, 5, v21")
        A("v_bfe_u32 v22, v0, 4, 1"); A("v_lshlrev_b32 v22, 4, v22")
        A("v_add3_u32 v20, v20, v21, v22")
        A("s_mov_b32 exec_lo, 0x00ff00ff"); A("s_mov_b32 exec_hi, 0xff00ff00")
        A(f"ds_write_b128 v20, v[120:123] offset:{GU}")
        A(f"ds_write_b128 v20, v[124:127] offset:{GU+512}")
        A("s_mov_b64 exec, -1")
        A("v_lshrrev_b32 v20, 5, v0"); A("v_lshlrev_b32 v20, 9, v20")
        A("v_and_b32 v21, 31, v0"); A("v_lshlrev_b32 v21, 3, v21")
        A("v_add_u32 v20, v20, v21")
        A("s_waitcnt lgkmcnt(0)")
        A(f"ds_read_b64 v[24:25], v20 offset:{GU}")
        A(f"ds_read_b64 v[26:27], v20 offset:{GU+256}")
        A("s_waitcnt lgkmcnt(0)")
        A("v_add_f32 v28, v24, v26"); A("v_mov_b32 v29, s69")
        A("v_add_f32 v30, v25, v27"); A("v_mov_b32 v31, s69")
        self.pub(28, 37, "0", "s91")
        self.gather8(H0F)
        A("v_cvt_pk_bf16_f32 v40, v40, v42")
        A("v_lshlrev_b32 v44, 16, v40")
        A("v_and_b32 v45, 0xffff0000, v40")
        A("v_mov_b32 v46, v44"); A("v_mov_b32 v47, v45")
        A("v_permlane32_swap_b32 v46, v48")
        A("v_permlane32_swap_b32 v47, v49")
        for g, u in ((44, 48), (45, 49)):
            A(f"v_mul_f32 v50, {LOG2E ^ 0x80000000:#x}, v{g}")
            A("v_exp_f32 v50, v50")
            A("v_add_f32 v50, 1.0, v50")
            A("v_rcp_f32 v51, v50")
            A(f"v_mul_f32 v{g}, v{g}, v51")
        A("v_cvt_pk_bf16_f32 v50, v44, v45")
        A("v_lshlrev_b32 v44, 16, v50")
        A("v_and_b32 v45, 0xffff0000, v50")
        A("v_mul_f32 v44, v44, v48")
        A("v_mul_f32 v45, v45, v49")
        A("v_cvt_pk_bf16_f32 v50, v44, v45")
        A("v_lshlrev_b32 v21, 2, v0")
        A("s_mov_b32 exec_lo, -1"); A("s_mov_b32 exec_hi, 0")
        A(f"ds_write_b32 v21, v50 offset:{HL}")
        A("s_mov_b64 exec, -1")
        self.stamp(1)
        A("s_lshl_b32 s7, s2, 3")
        A("v_mov_b32 v20, s7")
        A("buffer_load_dwordx2 v[30:31], v20, s[40:43], 0 offen")
        self.srd(60, 34, 1280)
        A("s_lshl_b32 s7, s2, 10"); A(f"s_add_u32 s7, s7, {H2:#x}")
        A("v_and_b32 v36, 31, v0"); A("v_lshlrev_b32 v36, 5, v36")
        A("v_lshrrev_b32 v21, 5, v0"); A("v_lshlrev_b32 v21, 4, v21")
        A("v_add3_u32 v36, v36, v21, s7")
        A("s_waitcnt vmcnt(0)")
        A("v_lshlrev_b32 v32, 16, v30"); A("v_and_b32 v33, 0xffff0000, v30")
        A("v_lshlrev_b32 v34, 16, v31"); A("v_and_b32 v35, 0xffff0000, v31")
        self.stamp(2)
        A("s_waitcnt vmcnt(0) lgkmcnt(0)")
        A("s_barrier")
        lend = self.L("a1end")
        A("s_cmp_ge_u32 s2, 160")
        A(f"s_cbranch_scc1 {lend}")
        if "early2" not in self.exp:
            l0, l1 = self.L("y2"), self.L("y2d")
            A("v_mov_b32 v23, 0")
            A(f"s_mov_b32 s14, {SPIN_LDS*4}")
            A(f"{l0}:")
            A(f"ds_read_b32 v24, v23 offset:{YCNT}")
            A("s_waitcnt lgkmcnt(0)")
            A("v_readfirstlane_b32 s15, v24")
            A("s_cmp_eq_u32 s15, 8")
            A(f"s_cbranch_scc1 {l1}")
            A("s_sub_u32 s14, s14, 1"); A("s_cmp_lg_u32 s14, 0"); A(f"s_cbranch_scc1 {l0}")
            A(f"{l1}:")
        NS = self.NS2
        SET = [40 + 4*k for k in range(NS)]
        def poll2(k):
            A(f"buffer_load_dwordx4 v[{SET[k]}:{SET[k]+3}], v36, s[56:59], 0 offen sc1")
        for k in range(NS): poll2(k)
        l0, l1 = self.L("h2"), self.L("h2d")
        A(f"s_mov_b32 s14, {SPIN_GLB}")
        A(f"{l0}:")
        for k in range(NS):
            S = SET[k]
            A(f"s_waitcnt vmcnt({NS - 1})")
            A(f"v_cmp_eq_u32 vcc, s69, v{S+1}")
            A(f"v_cmp_eq_u32_e64 s[66:67], s69, v{S+3}")
            for n in (8, 4, 2, 1):
                a, b = (S, S + 2) if n == 8 else (24, 26)
                A(f"v_add_f32_dpp v24, v{a}, v{a} row_ror:{n} row_mask:0xf bank_mask:0xf")
                A(f"v_add_f32_dpp v26, v{b}, v{b} row_ror:{n} row_mask:0xf bank_mask:0xf")
            A("s_and_b64 vcc, vcc, s[66:67]")
            A("v_add_f32_dpp v24, v24, v24 row_bcast:15 row_mask:0xa bank_mask:0xf")
            A("v_add_f32_dpp v26, v26, v26 row_bcast:15 row_mask:0xa bank_mask:0xf")
            A("s_cmp_eq_u64 vcc, -1")
            A(f"s_cbranch_scc1 {l1}")
            if "nomask" not in self.exp:
                A("s_not_b64 exec, vcc")
            poll2(k)
            if "nomask" not in self.exp:
                A("s_mov_b64 exec, -1")
        A("s_sub_u32 s14, s14, 1")
        A("s_cmp_lg_u32 s14, 0")
        A(f"s_cbranch_scc1 {l0}")
        A(f"{l1}:")
        A("s_lshl_b32 s7, s2, 3")
        A("v_mov_b32 v20, s7")
        A("v_readlane_b32 s8, v24, 31"); A("v_readlane_b32 s9, v26, 31")
        A("v_readlane_b32 s10, v24, 63"); A("v_readlane_b32 s11, v26, 63")
        A("v_add_f32 v32, s8, v32"); A("v_add_f32 v33, s9, v33")
        A("v_add_f32 v34, s10, v34"); A("v_add_f32 v35, s11, v35")
        A("v_cvt_pk_bf16_f32 v32, v32, v33")
        A("v_cvt_pk_bf16_f32 v33, v34, v35")
        A("s_mov_b64 exec, 1")
        A("buffer_store_dwordx2 v[32:33], v20, s[60:63], 0 offen")
        lne = self.L("noep")
        A("s_cmp_lg_u32 s2, 0")
        A(f"s_cbranch_scc1 {lne}")
        A(f"v_mov_b32 v20, {EPOCH:#x}")
        A("v_mov_b32 v21, s69")
        A("buffer_store_dword v21, v20, s[56:59], 0 offen")
        A(f"{lne}:")
        A("s_mov_b64 exec, -1")
        A(f"{lend}:")
        self.stamp(3)
        if self.stamps:
            self.write_stamps(19, 3, k0=1)
        A("s_endpgm")

    def build(self):
        A = self.A
        A(f"; @launch grid=(256,1,1) block=(640,1,1) lds={LDS_SIZE}")
        A('.amdgcn_target "amdgcn-amd-amdhsa--gfx950"')
        A(".text"); A(f".globl {KN}"); A(".p2align 8"); A(f".type {KN},@function"); A(f"{KN}:")
        self.prologue()
        self.streaming()
        A("L_aux:")
        self.aux_common()
        A("s_cmp_eq_u32 s3, 9")
        A("s_cbranch_scc1 L_aux1")
        self.aux0()
        A("L_aux1:")
        self.aux1()
        A("L_end:")
        A("s_endpgm")
        nv = 168
        A('.section .rodata,"a"'); A(".p2align 6"); A(f".amdhsa_kernel {KN}")
        A(f"  .amdhsa_next_free_vgpr {nv}"); A("  .amdhsa_next_free_sgpr 102"); A(f"  .amdhsa_accum_offset {nv}")
        A("  .amdhsa_group_segment_fixed_size 0"); A("  .amdhsa_kernarg_size 96"); A("  .amdhsa_user_sgpr_count 2")
        A("  .amdhsa_user_sgpr_kernarg_segment_ptr 1"); A("  .amdhsa_system_sgpr_workgroup_id_x 1"); A(".end_amdhsa_kernel")
        return HDR + A.finish()


if __name__ == "__main__":
    ap = argparse.ArgumentParser()
    ap.add_argument("-o", default=f"cdna_kernels/{NAME}.s")
    ap.add_argument("--D", type=int, default=4)
    ap.add_argument("--DV", type=int, default=0)
    ap.add_argument("--N1", type=int, default=24)
    ap.add_argument("--DW", type=int, default=10)
    ap.add_argument("--gmlpos", type=int, default=24)
    ap.add_argument("--stamps", action="store_true")
    ap.add_argument("--map", default="xcd")
    ap.add_argument("--exp", default="")
    ap.add_argument("--nohint", action="store_true")
    ap.add_argument("--NS1", type=int, default=1)
    ap.add_argument("--NS2", type=int, default=1)
    ap.add_argument("--budget", type=int, default=2)
    a = ap.parse_args()
    g = G(D=a.D, DV=a.DV, N1=a.N1, DW=a.DW, stamps=a.stamps, gmlpos=a.gmlpos, mapping=a.map, exp=a.exp, hint=not a.nohint, NS1=a.NS1, NS2=a.NS2, budget=a.budget)
    open(a.o, "w").write(g.build())
    print("wrote", a.o)
```

```python
import sys, os, argparse
sys.path.insert(0, os.path.dirname(os.path.abspath(__file__)))
from asmlib import Asm

NAME = "parallel_sum__gqa_block_cached__glu_gated_swiglu__decode"
KN = NAME + "_kernel"
HDR = open(f"cdna_kernels/{NAME}.s.ref").read().split("; Override launch")[0]

H0Q, H0F, H1O, H1ML = 0x0, 0x40000, 0x80000, 0xC0000
GOFF = 0x100000
H2, EPOCH, STAMP = 0x1D0000, 0x1F8000, 0x200000
WS_SIZE = 0x400000
NLOC = 64
LCG_A, LCG_C = 0x41C64E6D, 0x3039
XN0, XN1, QL, HL = 0x000, 0x500, 0xA00, 0xB00
QFLAG, GFLAG, GML, TAGL, YCNT, MLF, ML = 0xB80, 0xB84, 0xB88, 0xB90, 0xB98, 0xBA0, 0xBC0
OL, YL, GU = 0xC00, 0x1C00, 0x2C00
LDS_SIZE = 0x3000
LOG2E = 0x3FB8AA3B
SCALE = 0x3DB504F3
OOB = 0x40000000
SPIN_LDS = 1 << 16
SPIN_GLB = 1 << 12
RING = 40


class G:
    def __init__(self, D=4, DV=None, N1=24, DW=10, stamps=False, gmlpos=24, mapping="xcd", exp="", hint=True, NS1=1, NS2=1, budget=2):
        self.exp = set(exp.split(",")) if exp else set()
        self.mapping = mapping
        self.A = Asm()
        self.D, self.N1, self.DW, self.stamps, self.gmlpos = D, N1, DW, stamps, gmlpos
        self.DV = DV if DV else D
        self.hint = hint
        self.NS1, self.NS2, self.budget = NS1, NS2, budget
        self.dbg = "dbg" in self.exp
        self.dbgwg = 0
        for x in self.exp:
            if x.startswith("dbgwg"): self.dbgwg = int(x[5:])
        self.lbl = 0
        self.in_stream = False

    def L(self, base):
        self.lbl += 1
        return f"L_{base}_{self.lbl}"

    def kstamp(self, k):
        if self.stamps and "kst" in self.exp:
            self.A(f"s_memrealtime s[{70+2*k}:{71+2*k}]")

    def stamp(self, k):
        if self.in_stream and "kst" in self.exp: return
        if self.stamps:
            self.A(f"s_memrealtime s[{70+2*k}:{71+2*k}]")

    def write_stamps(self, first_slot, n, vt=4, k0=0):
        if not self.stamps: return
        A = self.A
        A("s_waitcnt lgkmcnt(0)")
        A("s_mov_b64 exec, 1")
        A(f"s_lshl_b32 s68, s2, 8")
        A(f"s_add_u32 s68, s68, {STAMP + first_slot*8}")
        A(f"v_mov_b32 v{vt}, s68")
        for k in range(n):
            A(f"v_mov_b32 v{vt+2}, s{70+2*(k+k0)}")
            A(f"v_mov_b32 v{vt+3}, s{71+2*(k+k0)}")
            A(f"buffer_store_dwordx2 v[{vt+2}:{vt+3}], v{vt}, s[56:59], 0 offen offset:{k*8}")
            A("s_waitcnt vmcnt(0)")
        A("s_mov_b64 exec, -1")

    def dbg_stamps(self, ks, first):
        A = self.A
        l = self.L("nodbg")
        A("s_waitcnt lgkmcnt(0)")
        self.srd(96, 36, 256)
        A(f"s_cmp_lg_u32 s2, {self.dbgwg}")
        A(f"s_cbranch_scc1 {l}")
        A("s_mov_b64 exec, 1")
        A("v_mov_b32 v4, 0")
        for i, k in enumerate(ks):
            A(f"s_sub_u32 s68, s{70+2*k}, s70")
            A("v_mov_b32 v6, s68")
            A(f"buffer_store_dword v6, v4, s[96:99], 0 offen offset:{(first+i)*4}")
        A("s_waitcnt vmcnt(0)")
        A("s_mov_b64 exec, -1")
        A(f"{l}:")

    def srd(self, base, lo, size):
        A = self.A
        A(f"s_mov_b32 s{base}, s{lo}"); A(f"s_mov_b32 s{base+1}, s{lo+1}")
        A(f"s_mov_b32 s{base+2}, {size:#x}"); A(f"s_mov_b32 s{base+3}, 0x20000")

    def spin_lds(self, off, vtmp, vzero, scnt="s14", stmp="s15"):
        A = self.A
        l0, l1 = self.L("sp"), self.L("spd")
        A(f"v_mov_b32 v{vzero}, 0")
        A(f"s_mov_b32 {scnt}, {SPIN_LDS}")
        A(f"{l0}:")
        A(f"ds_read_b32 v{vtmp}, v{vzero} offset:{off}")
        A("s_waitcnt lgkmcnt(0)")
        A(f"v_readfirstlane_b32 {stmp}, v{vtmp}")
        A("s_nop 0")
        A(f"s_cmp_lg_u32 {stmp}, 0")
        A(f"s_cbranch_scc1 {l1}")
        A(f"s_sub_u32 {scnt}, {scnt}, 1")
        A(f"s_cmp_lg_u32 {scnt}, 0")
        A(f"s_cbranch_scc1 {l0}")
        A(f"{l1}:")

    def red16(self, op, v):
        A = self.A
        for n in (8, 4, 2, 1):
            A(f"{op}_dpp v{v}, v{v}, v{v} row_ror:{n} row_mask:0xf bank_mask:0xf")

    def red64_lane63(self, op, v):
        A = self.A
        self.red16(op, v)
        A(f"{op}_dpp v{v}, v{v}, v{v} row_bcast:15 row_mask:0xa bank_mask:0xf")
        A(f"{op}_dpp v{v}, v{v}, v{v} row_bcast:31 row_mask:0xc bank_mask:0xf")

    def red8(self, op, v):
        A = self.A
        A(f"{op}_dpp v{v}, v{v}, v{v} quad_perm:[1,0,3,2] row_mask:0xf bank_mask:0xf")
        A(f"{op}_dpp v{v}, v{v}, v{v} quad_perm:[2,3,0,1] row_mask:0xf bank_mask:0xf")
        A(f"{op}_dpp v{v}, v{v}, v{v} row_half_mirror row_mask:0xf bank_mask:0xf")

    def masks(self, m0, t0, t1):
        A = self.A
        A(f"v_and_b32 v{t0}, 1, v0")
        A(f"v_lshlrev_b32 v{t0}, 4, v{t0}")
        A(f"v_mov_b32 v{t1}, 0xffff")
        A(f"v_lshlrev_b32 v{t0}, v{t0}, v{t1}")
        A(f"v_bfe_u32 v{t1}, v0, 1, 2")
        A(f"v_mov_b32 v{m0}, 1")
        A(f"v_lshlrev_b32 v{t1}, v{t1}, v{m0}")
        for r in range(4):
            A(f"v_bfe_i32 v{m0+r}, v{t1}, {r}, 1")
        for r in range(4):
            A(f"v_and_b32 v{m0+r}, v{m0+r}, v{t0}")

    def layernorm(self, xn_off):
        A = self.A
        for i in range(5):
            A(f"v_lshlrev_b32 v{10+2*i}, 16, v{4+i}")
            A(f"v_and_b32 v{11+2*i}, 0xffff0000, v{4+i}")
        A("v_add_f32 v20, v10, v11")
        for i in range(2, 10):
            A(f"v_add_f32 v20, v20, v{10+i}")
        self.red64_lane63("v_add_f32", 20)
        A("v_readlane_b32 s14, v20, 63")
        A(f"v_mov_b32 v21, 0x3acccccd")
        A("v_mul_f32 v21, s14, v21")
        A("v_sub_f32 v22, v10, v21")
        A("v_mul_f32 v20, v22, v22")
        for i in range(1, 10):
            A(f"v_sub_f32 v22, v{10+i}, v21")
            A("v_fmac_f32 v20, v22, v22")
        self.red64_lane63("v_add_f32", 20)
        A("v_readlane_b32 s14, v20, 63")
        A(f"v_mov_b32 v22, 0x3acccccd")
        A("v_mul_f32 v22, s14, v22")
        A("v_cvt_pk_bf16_f32 v23, v21, v22")
        A("v_lshlrev_b32 v21, 16, v23")
        A("v_and_b32 v22, 0xffff0000, v23")
        A("v_add_f32 v22, 0x3727c5ac, v22")
        A("v_cvt_pk_bf16_f32 v22, v22, v22")
        A("v_and_b32 v22, 0xffff0000, v22")
        A("v_sqrt_f32 v22, v22")
        A("v_cvt_pk_bf16_f32 v22, v22, v22")
        A("v_and_b32 v22, 0xffff0000, v22")
        A("v_rcp_f32 v23, v22")
        for i in range(5):
            a, b = 10 + 2*i, 11 + 2*i
            A(f"v_sub_f32 v{a}, v{a}, v21")
            A(f"v_sub_f32 v{b}, v{b}, v21")
            A(f"v_cvt_pk_bf16_f32 v24, v{a}, v{b}")
            A(f"v_lshlrev_b32 v{a}, 16, v24")
            A(f"v_and_b32 v{b}, 0xffff0000, v24")
            A(f"v_mul_f32 v25, v{a}, v23")
            A(f"v_mul_f32 v26, v{b}, v23")
            A(f"v_fma_f32 v27, -v25, v22, v{a}")
            A(f"v_fma_f32 v28, -v26, v22, v{b}")
            A(f"v_fmac_f32 v25, v27, v23")
            A(f"v_fmac_f32 v26, v28, v23")
            A(f"v_cvt_pk_bf16_f32 v{4+i}, v25, v26")
        A("v_lshlrev_b32 v9, 2, v0")
        A(f"ds_write2st64_b32 v9, v4, v5 offset0:{xn_off//256} offset1:{xn_off//256+1}")
        A(f"ds_write2st64_b32 v9, v6, v7 offset0:{xn_off//256+2} offset1:{xn_off//256+3}")
        A(f"ds_write_b32 v9, v8 offset:{xn_off+1024}")

    def check_tags(self, regs, tmp, tmp2):
        A = self.A
        if len(regs) == 2:
            A(f"v_cmp_eq_u32 vcc, s69, v{regs[0]}")
            A(f"v_cmp_eq_u32_e64 s[66:67], s69, v{regs[1]}")
            A("s_nop 1")
            A("s_and_b64 vcc, vcc, s[66:67]")
        else:
            for op, t in (("min", tmp), ("max", tmp2)):
                A(f"v_{op}3_u32 v{t}, v{regs[0]}, v{regs[1]}, v{regs[2]}")
                i = 3
                while i < len(regs):
                    if i + 1 < len(regs):
                        A(f"v_{op}3_u32 v{t}, v{t}, v{regs[i]}, v{regs[i+1]}"); i += 2
                    else:
                        A(f"v_{op}_u32 v{t}, v{t}, v{regs[i]}"); i += 1
            A(f"v_cmp_eq_u32 vcc, s69, v{tmp}")
            A(f"v_cmp_eq_u32_e64 s[66:67], s69, v{tmp2}")
            A("s_nop 1")
            A("s_and_b64 vcc, vcc, s[66:67]")
        A("s_cmp_eq_u64 vcc, -1")

    def spin_init(self, sc):
        A = self.A
        A("s_cmp_eq_u32 s90, 0")
        A(f"s_cselect_b32 {sc}, {NLOC}, {SPIN_GLB}")

    def spin_next(self, sc, lloop, ldone):
        A = self.A
        A(f"s_sub_u32 {sc}, {sc}, 1")
        A(f"s_cmp_lg_u32 {sc}, 0")
        A(f"s_cbranch_scc1 {lloop}")
        A("s_cmp_lg_u32 s90, 0")
        A(f"s_cbranch_scc1 {ldone}")
        A(f"s_mov_b32 s90, {GOFF:#x}")
        A(f"s_mov_b32 {sc}, {SPIN_GLB}")
        A(f"s_branch {lloop}")

    def poll_loop(self, issue, check_regs, tmp, tmp2, sc="s14"):
        A = self.A
        l0, l1 = self.L("pl"), self.L("pld")
        self.spin_init(sc)
        A(f"{l0}:")
        issue()
        A("s_waitcnt vmcnt(0)")
        self.check_tags(list(check_regs), tmp, tmp2)
        A(f"s_cbranch_scc1 {l1}")
        self.spin_next(sc, l0, l1)
        A(f"{l1}:")

    def gather8(self, base_const):
        A = self.A
        A("s_lshl_b32 s7, s4, 13")
        if base_const: A(f"s_add_u32 s7, s7, {base_const:#x}")
        A("v_lshlrev_b32 v20, 4, v0")
        A("v_add_u32 v20, s7, v20")
        A("v_add_u32 v21, 0x1000, v20")
        def issue():
            for sp in range(8):
                A(f"buffer_load_dwordx4 v[{40+4*sp}:{43+4*sp}], v{20 + (sp >> 2)}, s[56:59], s90 offen offset:{(sp & 3)*1024} sc1")
        self.poll_loop(issue, [41 + 2*i for i in range(16)], 22, 23)
        for sp in range(1, 8):
            A(f"v_add_f32 v40, v40, v{40+4*sp}")
            A(f"v_add_f32 v42, v42, v{42+4*sp}")

    def pub(self, regs, va, loc_soff, glob_soff):
        A = self.A
        A(f"buffer_store_dwordx4 v[{regs}:{regs+3}], v{va}, s[56:59], {loc_soff} offen")
        A(f"buffer_store_dwordx4 v[{regs}:{regs+3}], v{va}, s[56:59], {glob_soff} offen sc1")

    def get_tag(self, v):
        A = self.A
        A(f"v_readfirstlane_b32 s68, v{v}")
        A(f"s_mul_i32 s69, s68, {LCG_A:#x}")
        A(f"s_add_u32 s69, s69, {LCG_C:#x}")

    def prologue(self):
        A = self.A
        A("s_cmp_ge_u32 s2, 256")
        A("s_cbranch_scc1 L_end")
        if self.stamps:
            A("s_memrealtime s[70:71]")
        A("s_load_dwordx16 s[16:31], s[0:1], 0")
        A("s_load_dwordx8 s[32:39], s[0:1], 64")
        A("v_lshrrev_b32 v1, 6, v0")
        A("v_and_b32 v0, 63, v0")
        A("s_and_b32 s4, s2, 7")
        A("v_readfirstlane_b32 s3, v1")
        if self.mapping == "xcd":
            A("s_lshr_b32 s5, s2, 3")
            A("s_and_b32 s6, s5, 3")
            A("s_lshl_b32 s4, s4, 2")
            A("s_add_u32 s4, s4, s6")
            A("s_lshr_b32 s5, s5, 2")
        else:
            A("s_mov_b32 s5, s4")
            A("s_lshr_b32 s4, s2, 3")
        A("s_lshl_b32 s6, s4, 3")
        A("s_add_u32 s6, s6, s5")
        A("s_cmp_ge_u32 s3, 8")
        A("s_cbranch_scc1 L_aux")

    def streaming(self):
        A = self.A
        self.in_stream = True
        D, N1 = self.D, self.N1
        A("s_lshl_b32 s7, s4, 21")
        A("s_lshl_b32 s8, s5, 18")
        A("s_add_u32 s7, s7, s8")
        A("s_lshl_b32 s8, s3, 10")
        A("s_add_u32 s7, s7, s8")
        A("v_bfe_u32 v36, v0, 2, 2")
        A("v_lshlrev_b32 v36, 8, v36")
        A("v_lshrrev_b32 v2, 4, v0")
        A("v_lshlrev_b32 v2, 6, v2")
        A("v_and_b32 v3, 3, v0")
        A("v_lshlrev_b32 v3, 4, v3")
        A("v_add3_u32 v36, v36, v2, v3")
        A("v_add_u32 v36, s7, v36")
        A("v_lshlrev_b32 v1, 4, v0")
        A("v_add_u32 v1, s7, v1")
        A("s_mov_b32 s42, 0x4000000"); A("s_mov_b32 s43, 0x20000")
        A("s_mov_b32 s7, 0")
        A("s_waitcnt lgkmcnt(0)")
        A("s_mov_b32 s40, s18"); A("s_mov_b32 s41, s19")
        loads = [("K", j) for j in range(32)] + [("V", j) for j in range(32)] + [("W", j) for j in range(6)]
        NL = len(loads)
        st = dict(issued=0, arrived=-1)
        consumed = set()

        def slot(i): return RING + (i % 32) * 4

        def issue(i):
            kind, j = loads[i]
            r = slot(i)
            if i >= 32: assert (i - 32) in consumed, f"slot for load {i} not free"
            if kind in "KV":
                srd = "s[40:43]" if kind == "K" else "s[44:47]"
                va = "v36" if kind == "K" else "v1"
                if "knat" in self.exp: va = "v1"
                if kind == "V" and j == 0:
                    A("s_mov_b32 s7, 0")
                A(f"buffer_load_dwordx4 v[{r}:{r+3}], {va}, {srd}, s7 offen nt")
                if j < 31:
                    A("s_add_u32 s7, s7, 0x2000")
            else:
                if j < 2:
                    A(f"buffer_load_dwordx4 v[{r}:{r+3}], v3, s[52:55], 0 offen offset:{j*1280} nt")
                else:
                    A(f"buffer_load_dwordx4 v[{r}:{r+3}], v2, s[48:51], 0 offen offset:{(j-2)*1280} nt")
            st["issued"] += 1

        def need(i):
            if st["arrived"] >= i: return
            A(f"s_waitcnt vmcnt({st['issued'] - 1 - i})")
            st["arrived"] = i

        def kpost(p):
            acc = 20 if (p & 1) == 0 else 26
            A(f"v_cndmask_b32_e64 v30, v{acc}, v{acc+1}, s[8:9]")
            A(f"v_cndmask_b32_e64 v30, v30, v{acc+2}, s[10:11]")
            A(f"v_cndmask_b32_e64 v30, v30, v{acc+3}, s[12:13]")
            A("v_add_f32_dpp v30, v30, v30 quad_perm:[1,0,3,2] row_mask:0xf bank_mask:0xf")
            S = 24 + (p >> 2)
            if (p & 3) == 0:
                A(f"v_add_f32_dpp v{S}, v30, v30 quad_perm:[2,3,0,1] row_mask:0xf bank_mask:0xf")
            else:
                A(f"v_add_f32_dpp v30, v30, v30 quad_perm:[2,3,0,1] row_mask:0xf bank_mask:0xf")
                m = 8 + 2 * ((p & 3) - 1)
                A(f"v_cndmask_b32_e64 v{S}, v{S}, v30, s[{m}:{m+1}]")

        def kgroup(p):
            acc = 20 if (p & 1) == 0 else 26
            for t in range(4):
                r = slot(4*p + t)
                c = "0" if t == 0 else f"v[{acc}:{acc+3}]"
                A(f"v_mfma_f32_16x16x32_bf16 v[{acc}:{acc+3}], v[{r}:{r+3}], v[{4+4*t}:{7+4*t}], {c}")
                consumed.add(4*p + t)
            if p > 0: kpost(p - 1)

        def softmax():
            kpost(7)
            A("v_cvt_pk_bf16_f32 v26, v24, v25")
            A("v_lshlrev_b32 v24, 16, v26")
            A("v_and_b32 v25, 0xffff0000, v26")
            A(f"v_mul_f32 v24, {SCALE:#x}, v24")
            A(f"v_mul_f32 v25, {SCALE:#x}, v25")
            A("v_cvt_pk_bf16_f32 v26, v24, v25")
            A("v_lshlrev_b32 v24, 16, v26")
            A("v_and_b32 v25, 0xffff0000, v26")
            A("v_max_f32 v27, v24, v25")
            self.red64_lane63("v_max_f32", 27)
            A("v_readlane_b32 s60, v27, 63")
            A("v_subrev_f32 v24, s60, v24")
            A("v_subrev_f32 v25, s60, v25")
            A(f"v_mul_f32 v24, {LOG2E:#x}, v24")
            A(f"v_mul_f32 v25, {LOG2E:#x}, v25")
            A("v_exp_f32 v24, v24")
            A("v_exp_f32 v25, v25")
            A("s_lshl_b32 s14, s3, 3")
            A("v_mov_b32 v30, s14")
            A("v_add_f32 v27, v24, v25")
            A("v_cvt_pk_bf16_f32 v24, v24, v24")
            A("v_cvt_pk_bf16_f32 v25, v25, v25")
            self.red64_lane63("v_add_f32", 27)
            A("v_readlane_b32 s61, v27, 63")
            A("v_mov_b32 v28, s60")
            A("s_lshl_b32 s14, s3, 2")
            A("v_mov_b32 v31, s14")
            A("v_mov_b32 v29, s61")
            A("v_mov_b32 v27, 1")
            A("s_mov_b64 exec, 1")
            A(f"ds_write_b64 v30, v[28:29] offset:{ML}")
            A(f"ds_write_b32 v31, v27 offset:{MLF}")
            A("s_mov_b64 exec, -1")
            self.stamp(3)

        def tile_of(j):
            p = (j >> 2) & 3; t = j & 3
            return 24 + (j >> 4), 4 * t + p

        def buildA(j):
            P, c = tile_of(j)
            a = 12 + (j & 1) * 4
            for r in range(4):
                A(f"v_and_b32_dpp v{a+r}, v{P}, v{32+r} row_newbcast:{c} row_mask:0xf bank_mask:0xf")

        def vtile(j):
            a = 12 + (j & 1) * 4
            r = slot(32 + j)
            c = "0" if j == 0 else "v[20:23]"
            A(f"v_mfma_f32_16x16x32_bf16 v[20:23], v[{a}:{a+3}], v[{r}:{r+3}], {c}")
            consumed.add(32 + j)
            if j + 1 < 32: buildA(j + 1)

        def gml():
            self.spin_lds(GFLAG, 30, 31)
            A(f"ds_read_b64 v[28:29], v31 offset:{GML}")
            A("s_waitcnt lgkmcnt(0)")
            A("v_sub_f32 v36, s60, v28")
            A(f"v_mul_f32 v36, {LOG2E:#x}, v36")
            A("v_exp_f32 v36, v36")
            A("v_mul_f32 v36, v36, v29")

        tasks = [("kg", p, 4*p + 3) for p in range(8)] + [("sm", 0, 31)]
        for j in range(32):
            if j == self.gmlpos: tasks.append(("gml", 0, -1))
            tasks.append(("v", j, 32 + j))

        def run(t):
            kind, x, nd = t
            if kind == "kg": kgroup(x)
            elif kind == "sm":
                softmax(); buildA(0)
            elif kind == "gml": gml()
            else: vtile(x)

        for i in range(D): issue(i)
        A("s_mov_b32 s44, s20"); A("s_mov_b32 s45, s21")
        A("s_mov_b32 s46, 0x4000000"); A("s_mov_b32 s47, 0x20000")
        self.srd(48, 24, 4096 * 640 * 2)
        self.srd(52, 32, 1728 * 640 * 2)
        self.srd(56, 38, WS_SIZE)
        A("s_barrier")
        self.masks(32, 26, 27)
        for p, val in ((8, 0x22222222), (10, 0x44444444), (12, 0x88888888)):
            A(f"s_mov_b32 s{p}, {val:#x}"); A(f"s_mov_b32 s{p+1}, {val:#x}")
        A("v_lshrrev_b32 v26, 4, v0")
        A("v_and_b32 v27, 15, v0")
        A("s_mul_i32 s14, s5, 160")
        A("v_lshlrev_b32 v28, 4, v27")
        A("v_add_u32 v28, s14, v28")
        A(f"v_mov_b32 v29, {OOB:#x}")
        A("v_cmp_gt_u32 vcc, 10, v27")
        A("v_cndmask_b32 v28, v29, v28, vcc")
        A("s_lshl_b32 s14, s4, 7"); A("s_lshl_b32 s15, s3, 4"); A("s_add_u32 s14, s14, s15")
        A("s_mul_i32 s14, s14, 1280")
        A("v_mul_u32_u24 v29, 5120, v26")
        A("v_add3_u32 v2, v28, v29, s14")
        A("s_lshl_b32 s14, s4, 6"); A("s_lshl_b32 s15, s3, 3"); A("s_add_u32 s14, s14, s15")
        A("s_mul_i32 s14, s14, 1280")
        A("v_mul_u32_u24 v29, 2560, v26")
        A("v_add3_u32 v3, v28, v29, s14")
        if "nowo" in self.exp:
            A(f"v_mov_b32 v2, {OOB:#x}"); A(f"v_mov_b32 v3, {OOB:#x}")
        A("v_and_b32 v29, 1, v26")
        A("v_lshlrev_b32 v29, 4, v29")
        A("v_lshlrev_b32 v37, 5, v27")
        A("s_lshl_b32 s14, s3, 9")
        A("v_add3_u32 v37, v37, v29, s14")
        A("v_and_b32 v29, 7, v27")
        A("v_lshlrev_b32 v29, 10, v29")
        A("v_lshrrev_b32 v30, 3, v27")
        A("v_lshlrev_b32 v30, 4, v30")
        A("v_lshlrev_b32 v31, 5, v26")
        A("v_add3_u32 v38, v29, v30, v31")
        A("s_lshl_b32 s14, s4, 13"); A("s_lshl_b32 s15, s3, 7"); A("s_add_u32 s14, s14, s15")
        A(f"s_add_u32 s14, s14, {H1O:#x}")
        A("v_add_u32 v38, s14, v38")
        A("s_lshl_b32 s14, s3, 4")
        A("v_lshlrev_b32 v39, 2, v26")
        A("v_add_u32 v39, s14, v39")

        ti = 0
        qdone = False
        for i in range(D, NL):
            kind = loads[i][0]
            Dh = {"K": D, "V": self.DV, "W": self.DW}[kind]
            while i >= 32 and (i - 32) not in consumed:
                t = tasks[ti]; need(t[2]); run(t); ti += 1
            if st["issued"] - (st["arrived"] + 1) >= Dh:
                need(i - Dh)
            issue(i)
            kmap = {4: 1, 10: 2, 16: 3, 23: 4, 28: 5, 32: 6, 40: 7}
            if i in kmap: self.kstamp(kmap[i])
            if i == N1 - 1:
                self.stamp(1)
                self.spin_lds(QFLAG, 30, 31)
                A("v_lshrrev_b32 v30, 4, v0")
                A("v_lshlrev_b32 v30, 6, v30")
                A("v_and_b32 v29, 3, v0")
                A("v_lshlrev_b32 v29, 4, v29")
                A("v_add_u32 v30, v30, v29")
                A(f"ds_read_b128 v[26:29], v30 offset:{QL}")
                A(f"ds_read_b64 v[20:21], v31 offset:{TAGL}")
                for t, val in enumerate((0x000f000f, 0x00f000f0, 0x0f000f00, 0xf000f000)):
                    A(f"s_mov_b32 s{62 + 2*(t & 1)}, {val:#x}"); A(f"s_mov_b32 s{63 + 2*(t & 1)}, {val:#x}")
                    if t == 0: A("s_waitcnt lgkmcnt(0)")
                    m = 62 + 2*(t & 1)
                    for r in range(4):
                        A(f"v_cndmask_b32_e64 v{4+4*t+r}, 0, v{26+r}, s[{m}:{m+1}]")
                A("v_readfirstlane_b32 s69, v20")
                A("v_readfirstlane_b32 s90, v21")
                self.stamp(2)
                qdone = True
            if qdone:
                budget = self.budget
                while ti < len(tasks) and budget > 0 and tasks[ti][2] <= st["arrived"]:
                    t = tasks[ti]; run(t); ti += 1
                    budget -= 1
        while ti < len(tasks):
            t = tasks[ti]; need(t[2]); run(t); ti += 1
        for r in range(4):
            A(f"v_mul_f32 v{20+r}, v{20+r}, v36")
        A(f"ds_write_b128 v37, v[20:23] offset:{OL}")
        A("s_waitcnt lgkmcnt(0)")
        self.stamp(4)
        A("s_barrier")
        self.stamp(5)
        NS = self.NS1
        SET = [64 + 4*k for k in range(NS)]
        def poll1(k):
            A(f"buffer_load_dwordx4 v[{SET[k]}:{SET[k]+3}], v38, s[56:59], s90 offen sc1")
        for k in range(NS): poll1(k)
        A(f"ds_read_b32 v30, v39 offset:{HL}")
        A("s_mov_b32 s14, 0x01000100"); A("s_mov_b32 s15, 0x03020302")
        A("s_waitcnt lgkmcnt(0)")
        A("v_perm_b32 v31, v30, v30, s14")
        A("v_perm_b32 v30, v30, v30, s15")
        for r in range(4): A(f"v_and_b32 v{12+r}, v31, v{32+r}")
        for r in range(4): A(f"v_and_b32 v{16+r}, v30, v{32+r}")
        w = lambda j: slot(64 + j)
        A(f"s_waitcnt vmcnt({4 + NS})")
        A(f"v_mfma_f32_16x16x32_bf16 v[20:23], v[12:15], v[{w(0)}:{w(0)+3}], 0")
        A(f"v_mfma_f32_16x16x32_bf16 v[20:23], v[16:19], v[{w(1)}:{w(1)+3}], v[20:23]")
        l0, l1 = self.L("h1"), self.L("h1d")
        self.spin_init("s14")
        A(f"{l0}:")
        for k in range(NS):
            S = SET[k]
            A(f"s_waitcnt vmcnt({NS - 1})")
            A(f"v_cmp_eq_u32 vcc, s69, v{S+1}")
            A(f"v_cmp_eq_u32_e64 s[66:67], s69, v{S+3}")
            for n, stp in enumerate(("quad_perm:[1,0,3,2]", "quad_perm:[2,3,0,1]", "row_half_mirror")):
                a, b = (S, S + 2) if n == 0 else (24, 26)
                A(f"v_add_f32_dpp v24, v{a}, v{a} {stp} row_mask:0xf bank_mask:0xf")
                A(f"v_add_f32_dpp v26, v{b}, v{b} {stp} row_mask:0xf bank_mask:0xf")
            A("s_and_b64 vcc, vcc, s[66:67]")
            A("v_cvt_pk_bf16_f32 v24, v24, v24")
            A("v_cvt_pk_bf16_f32 v26, v26, v26")
            A("s_cmp_eq_u64 vcc, -1")
            A(f"s_cbranch_scc1 {l1}")
            poll1(k)
        self.spin_next("s14", l0, l1)
        A(f"{l1}:")
        self.stamp(6)
        for t in range(4):
            src = 24 if (t & 1) == 0 else 26
            c = 0 if t < 2 else 8
            a = 12 + (t & 1) * 4
            for r in range(4):
                A(f"v_and_b32_dpp v{a+r}, v{src}, v{32+r} row_newbcast:{c} row_mask:0xf bank_mask:0xf")
            A(f"v_mfma_f32_16x16x32_bf16 v[20:23], v[{a}:{a+3}], v[{w(2+t)}:{w(2+t)+3}], v[20:23]")
        A(f"ds_write_b128 v37, v[20:23] offset:{YL}")
        A("v_mov_b32 v30, 0"); A("v_mov_b32 v31, 1")
        A("s_mov_b64 exec, 1")
        A(f"ds_add_u32 v30, v31 offset:{YCNT}")
        A("s_mov_b64 exec, -1")
        A("s_waitcnt lgkmcnt(0)")
        self.stamp(7)
        if self.stamps and "wst" in self.exp:
            k = 4
            for kk in range(1, 8):
                if f"wst{kk}" in self.exp: k = kk
            A("s_waitcnt lgkmcnt(0)")
            A("s_mov_b64 exec, 1")
            A("s_lshl_b32 s68, s2, 8"); A("s_lshl_b32 s14, s3, 3"); A("s_add_u32 s68, s68, s14")
            A(f"s_add_u32 s68, s68, {STAMP + 16}")
            A("v_mov_b32 v4, s68")
            A(f"v_mov_b32 v6, s{70+2*k}"); A(f"v_mov_b32 v7, s{71+2*k}")
            A("buffer_store_dwordx2 v[6:7], v4, s[56:59], 0 offen")
            A("s_waitcnt vmcnt(0)")
        elif self.stamps and self.dbg:
            A("s_cmp_lg_u32 s3, 0")
            A("s_cbranch_scc1 L_end")
            self.dbg_stamps([1, 2, 3, 4, 5, 6, 7], 0)
        elif self.stamps:
            A("s_cmp_lg_u32 s3, 0")
            A("s_cbranch_scc1 L_end")
            self.write_stamps(2, 8)
        A("s_endpgm")

    def aux_common(self):
        A = self.A
        self.in_stream = False
        A("s_setprio 3")
        A("s_mov_b32 s90, 0")
        A(f"s_mov_b32 s91, {GOFF:#x}")
        A(f"v_mov_b32 v2, {EPOCH:#x}")
        A("v_lshlrev_b32 v9, 2, v0")
        A("s_mov_b32 s42, 0x500"); A("s_mov_b32 s43, 0x20000")
        A(f"s_mov_b32 s58, {WS_SIZE:#x}"); A("s_mov_b32 s59, 0x20000")
        A("s_waitcnt lgkmcnt(0)")
        A("s_mov_b32 s40, s16"); A("s_mov_b32 s41, s17")
        A("s_mov_b32 s56, s38"); A("s_mov_b32 s57, s39")
        for i in range(5):
            A(f"buffer_load_dword v{4+i}, v9, s[40:43], 0 offen offset:{i*256}")
        A("buffer_load_dword v3, v2, s[56:59], 0 offen")

    def aux0(self):
        A = self.A
        self.srd(44, 22, 640 * 4096 * 2)
        A("v_lshrrev_b32 v38, 4, v0")
        A("v_mul_u32_u24 v39, 20, v38")
        A("s_mul_i32 s7, s5, 80")
        A("v_add_u32 v39, s7, v39")
        A("v_lshlrev_b32 v39, 13, v39")
        A("v_and_b32 v38, 15, v0"); A("v_lshlrev_b32 v38, 4, v38")
        A("s_lshl_b32 s7, s4, 8")
        A("v_add3_u32 v39, v39, v38, s7")
        if "nowq" in self.exp: A(f"v_mov_b32 v39, {OOB:#x}")
        A("s_mov_b32 s7, 0")
        for t in range(20):
            A(f"buffer_load_dwordx4 v[{40+4*t}:{43+4*t}], v39, s[44:47], s7 offen nt")
            if t < 19: A("s_add_u32 s7, s7, 0x2000")
        A("v_mov_b32 v30, 0")
        A("v_lshlrev_b32 v34, 2, v0")
        A("s_mov_b64 exec, 0xffff")
        A(f"ds_write_b32 v34, v30 offset:{QFLAG}")
        A("s_mov_b64 exec, -1")
        A("s_waitcnt lgkmcnt(0)")
        A("s_barrier")
        A("s_lshl_b32 s7, s6, 10")
        A("v_lshlrev_b32 v35, 4, v0")
        A("v_add_u32 v35, s7, v35")
        A("s_lshl_b32 s7, s6, 4"); A(f"s_add_u32 s7, s7, {H1ML:#x}")
        A(f"v_mov_b32 v36, {OOB:#x}")
        A("v_mov_b32 v37, s7")
        A("v_cmp_eq_u32 vcc, 0, v0")
        A("v_cndmask_b32 v36, v36, v37, vcc")
        A("s_mul_i32 s7, s5, 20"); A("s_lshl_b32 s7, s7, 10"); A("s_lshl_b32 s10, s4, 5"); A("s_add_u32 s7, s7, s10")
        A(f"s_add_u32 s7, s7, {H2:#x}")
        A("v_lshrrev_b32 v37, 1, v0"); A("v_lshlrev_b32 v37, 10, v37")
        A("v_and_b32 v38, 1, v0"); A("v_lshlrev_b32 v38, 4, v38")
        A("v_add3_u32 v37, v37, v38, s7")
        A(f"v_mov_b32 v38, {OOB:#x}")
        A("v_cmp_gt_u32 vcc, 40, v0")
        A("v_cndmask_b32 v37, v38, v37, vcc")
        A("s_waitcnt vmcnt(20)")
        self.stamp(1)
        self.get_tag(3)
        NPW = 0
        self.layernorm(XN0)
        self.stamp(2)
        A("v_lshrrev_b32 v20, 4, v0")
        A("v_mul_u32_u24 v20, 40, v20")
        A("s_mul_i32 s7, s5, 160")
        A("v_add_u32 v20, s7, v20")
        A("s_waitcnt lgkmcnt(0)")
        for i in range(5):
            A(f"ds_read_b64 v[{10+2*i}:{11+2*i}], v20 offset:{XN0+8*i}")
        self.masks(4, 21, 22)
        A("s_mov_b32 s8, 0x01000100"); A("s_mov_b32 s9, 0x03020302")
        A("s_waitcnt lgkmcnt(0)")
        for t in range(20):
            a = 24 + (t & 1) * 4
            A(f"v_perm_b32 v21, v{10 + t//2}, v{10 + t//2}, s{8 + (t & 1)}")
            for r in range(4): A(f"v_and_b32 v{a+r}, v21, v{4+r}")
            A(f"s_waitcnt vmcnt({19 - t + NPW})")
            c = "0" if t == 0 else "v[120:123]"
            A(f"v_mfma_f32_16x16x32_bf16 v[120:123], v[{a}:{a+3}], v[{40+4*t}:{43+4*t}], {c}")
        A("s_mov_b32 s8, -1"); A("s_mov_b32 s9, 0")
        A("v_and_b32 v20, 15, v0"); A("v_lshlrev_b32 v20, 6, v20")
        A("v_bfe_u32 v21, v0, 4, 1"); A("v_lshlrev_b32 v21, 5, v21")
        A("v_lshrrev_b32 v22, 5, v0"); A("v_lshlrev_b32 v22, 4, v22")
        A("v_add3_u32 v20, v20, v21, v22")
        A("s_lshl_b32 s7, s6, 10")
        A("v_add_u32 v20, s7, v20")
        A("v_cndmask_b32_e64 v24, v122, v120, s[8:9]")
        A("v_mov_b32 v25, s69")
        A("v_cndmask_b32_e64 v26, v123, v121, s[8:9]")
        A("v_mov_b32 v27, s69")
        self.pub(24, 20, "0", "s91")
        self.stamp(3)
        self.gather8(H0Q)
        self.stamp(4)
        A("v_cvt_pk_bf16_f32 v40, v40, v42")
        A("v_lshlrev_b32 v21, 2, v0")
        A(f"ds_write_b32 v21, v40 offset:{QL}")
        A("v_mov_b32 v22, 1"); A("v_mov_b32 v23, 0"); A("v_mov_b32 v24, s69"); A("v_mov_b32 v25, s90")
        A("s_mov_b64 exec, 1")
        A(f"ds_write_b64 v23, v[24:25] offset:{TAGL}")
        A("s_waitcnt lgkmcnt(0)")
        A(f"ds_write_b32 v23, v22 offset:{QFLAG}")
        A("s_mov_b64 exec, -1")
        self.stamp(5)
        if "nopw" not in self.exp:
            A("s_xor_b32 s68, s69, 1")
            A(f"s_mov_b32 s93, {H1O:#x}")
            A("v_mov_b32 v28, 0"); A("v_mov_b32 v29, s68"); A("v_mov_b32 v30, 0"); A("v_mov_b32 v31, s68")
            A("buffer_store_dwordx4 v[28:31], v35, s[56:59], s93 offen")
            A("buffer_store_dwordx4 v[28:31], v36, s[56:59], 0 offen")
            A("s_waitcnt vmcnt(0)")
        A("v_and_b32 v20, 7, v0")
        A("v_lshlrev_b32 v21, 2, v20")
        A("v_lshlrev_b32 v20, 3, v20")
        l0, l1 = self.L("ml"), self.L("mld")
        A(f"s_mov_b32 s14, {SPIN_LDS*4}")
        A(f"{l0}:")
        A(f"ds_read_b32 v24, v21 offset:{MLF}")
        A(f"ds_read_b64 v[26:27], v20 offset:{ML}")
        A("s_waitcnt lgkmcnt(0)")
        A("v_cmp_ne_u32 vcc, 0, v24")
        A("s_nop 1")
        A("s_cmp_eq_u64 vcc, -1")
        A(f"s_cbranch_scc1 {l1}")
        A("s_sub_u32 s14, s14, 1"); A("s_cmp_lg_u32 s14, 0"); A(f"s_cbranch_scc1 {l0}")
        A(f"{l1}:")
        self.stamp(6)
        A("v_mov_b32 v28, v26")
        self.red8("v_max_f32", 28)
        A("v_sub_f32 v26, v26, v28")
        A(f"v_mul_f32 v26, {LOG2E:#x}, v26")
        A("v_exp_f32 v26, v26")
        A("v_mul_f32 v30, v26, v27")
        self.red8("v_add_f32", 30)
        A("v_mov_b32 v29, s69"); A("v_mov_b32 v31, s69")
        self.pub(28, 36, "0", "s91")
        A("s_lshl_b32 s7, s4, 7"); A(f"s_add_u32 s7, s7, {H1ML:#x}")
        A("v_lshlrev_b32 v21, 1, v20")
        A("v_add_u32 v21, s7, v21")
        def issue2():
            A("buffer_load_dwordx4 v[24:27], v21, s[56:59], s90 offen sc1")
        self.poll_loop(issue2, [25, 27], 22, 23)
        A("v_mov_b32 v28, v24")
        self.red8("v_max_f32", 28)
        A("v_sub_f32 v24, v24, v28")
        A(f"v_mul_f32 v24, {LOG2E:#x}, v24")
        A("v_exp_f32 v24, v24")
        A("v_mul_f32 v29, v24, v26")
        self.red8("v_add_f32", 29)
        A("v_rcp_f32 v30, v29")
        A("v_fma_f32 v31, -v29, v30, 1.0")
        A("v_fma_f32 v29, v31, v30, v30")
        A("v_mov_b32 v22, 1"); A("v_mov_b32 v23, 0")
        A("s_mov_b64 exec, 1")
        A(f"ds_write_b64 v23, v[28:29] offset:{GML}")
        A(f"ds_write_b32 v23, v22 offset:{GFLAG}")
        A("s_mov_b64 exec, -1")
        self.stamp(7)
        A("v_lshlrev_b32 v20, 3, v0")
        A("v_mov_b32 v41, s69"); A("v_mov_b32 v43, s69")
        A(f"s_mov_b32 s9, {H1O:#x}")
        A(f"s_mov_b32 s10, {H1O + GOFF:#x}")
        A("v_mov_b32 v65, s69"); A("v_mov_b32 v67, s69")
        A("v_mov_b32 v23, 0")
        A("s_waitcnt lgkmcnt(0)")
        A("s_barrier")
        for wv in range(8):
            A(f"ds_read_b64 v[{44+2*wv}:{45+2*wv}], v20 offset:{OL + wv*512}")
        self._sum8(44, 40, 42)
        self.pub(40, 35, "s9", "s10")
        self.stamp(8)
        l0, l1 = self.L("yw"), self.L("ywd")
        A(f"s_mov_b32 s14, {SPIN_LDS*4}")
        A(f"{l0}:")
        A(f"ds_read_b32 v24, v23 offset:{YCNT}")
        for wv in range(8):
            A(f"ds_read_b64 v[{44+2*wv}:{45+2*wv}], v20 offset:{YL + wv*512}")
        A("s_waitcnt lgkmcnt(8)")
        A("v_readfirstlane_b32 s15, v24")
        A("s_cmp_eq_u32 s15, 8")
        A(f"s_cbranch_scc1 {l1}")
        A("s_waitcnt lgkmcnt(0)")
        A("s_sub_u32 s14, s14, 1"); A("s_cmp_lg_u32 s14, 0"); A(f"s_cbranch_scc1 {l0}")
        A(f"{l1}:")
        self._sum8(44, 64, 66)
        A("buffer_store_dwordx4 v[64:67], v37, s[56:59], 0 offen sc1")
        self.stamp(9)
        if self.stamps and self.dbg:
            self.dbg_stamps([1, 3, 4, 6, 7, 8, 9], 7)
        elif self.stamps:
            A("s_getreg_b32 s14, hwreg(HW_REG_XCC_ID)")
            A("s_getreg_b32 s15, hwreg(HW_REG_HW_ID)")
            A("s_waitcnt lgkmcnt(0)")
            A("s_mov_b64 exec, 1")
            A("s_lshl_b32 s68, s2, 8"); A(f"s_add_u32 s68, s68, {STAMP}")
            A("v_mov_b32 v4, s68"); A("v_mov_b32 v8, s14"); A("v_mov_b32 v9, 0"); A("v_mov_b32 v10, s15"); A("v_mov_b32 v11, 0")
            A("buffer_store_dwordx4 v[8:11], v4, s[56:59], 0 offen")
            A("s_waitcnt vmcnt(0)")
            A("s_mov_b64 exec, -1")
            self.write_stamps(10, 9, k0=0 if "wst" in self.exp else 1)
        A("s_endpgm")

    def _sum8(self, base, d0, d1):
        A = self.A
        A("s_waitcnt lgkmcnt(0)")
        for (x, y) in ((0, 1), (2, 3), (4, 5), (6, 7)):
            A(f"v_add_f32 v{base+2*x}, v{base+2*x}, v{base+2*y}")
            A(f"v_add_f32 v{base+2*x+1}, v{base+2*x+1}, v{base+2*y+1}")
        for (x, y) in ((0, 2), (4, 6)):
            A(f"v_add_f32 v{base+2*x}, v{base+2*x}, v{base+2*y}")
            A(f"v_add_f32 v{base+2*x+1}, v{base+2*x+1}, v{base+2*y+1}")
        A(f"v_add_f32 v{d0}, v{base}, v{base+8}")
        A(f"v_add_f32 v{d1}, v{base+1}, v{base+9}")

    def aux1(self):
        A = self.A
        self.srd(44, 28, 640 * 1728 * 2)
        self.srd(48, 30, 640 * 1728 * 2)
        A("v_lshrrev_b32 v38, 3, v0")
        A("v_mul_u32_u24 v39, 10, v38")
        A("s_mul_i32 s7, s5, 80")
        A("v_add_u32 v39, s7, v39")
        A("v_mul_u32_u24 v39, 3456, v39")
        A("v_and_b32 v38, 7, v0"); A("v_lshlrev_b32 v38, 4, v38")
        A("s_lshl_b32 s7, s4, 7")
        A("s_cmp_ge_u32 s4, 27")
        A(f"s_cselect_b32 s7, {OOB:#x}, s7")
        A("v_add3_u32 v39, v39, v38, s7")
        if "now13" in self.exp: A(f"v_mov_b32 v39, {OOB:#x}")
        A("s_barrier")
        A("s_waitcnt vmcnt(0)")
        self.get_tag(3)
        A("s_lshl_b32 s7, s6, 10"); A(f"s_add_u32 s7, s7, {H0F:#x}")
        A("v_lshlrev_b32 v37, 4, v0")
        A("v_add_u32 v37, s7, v37")
        self.layernorm(XN1)
        A("s_mov_b32 s7, 0")
        for t in range(10):
            A(f"buffer_load_dwordx4 v[{40+8*t}:{43+8*t}], v39, s[44:47], s7 offen nt")
            A(f"buffer_load_dwordx4 v[{44+8*t}:{47+8*t}], v39, s[48:51], s7 offen nt")
            if t < 9: A("s_add_u32 s7, s7, 3456")
        A("v_lshrrev_b32 v20, 3, v0")
        A("v_mul_u32_u24 v20, 20, v20")
        A("s_mul_i32 s7, s5, 160")
        A("v_add_u32 v20, s7, v20")
        A(f"v_add_u32 v20, {XN1}, v20")
        A("s_waitcnt lgkmcnt(0)")
        A("ds_read2_b32 v[10:11], v20 offset0:0 offset1:1")
        A("ds_read2_b32 v[12:13], v20 offset0:2 offset1:3")
        A("ds_read_b32 v14, v20 offset:16")
        self.masks(4, 21, 22)
        A("s_mov_b32 s8, 0x01000100"); A("s_mov_b32 s9, 0x03020302")
        A("s_waitcnt lgkmcnt(0)")
        for t in range(10):
            a = 24 + (t & 1) * 4
            A(f"v_perm_b32 v21, v{10 + t//2}, v{10 + t//2}, s{8 + (t & 1)}")
            for r in range(4): A(f"v_and_b32 v{a+r}, v21, v{4+r}")
            A(f"s_waitcnt vmcnt({18 - 2*t})")
            c1 = "0" if t == 0 else "v[120:123]"
            c3 = "0" if t == 0 else "v[124:127]"
            A(f"v_mfma_f32_16x16x32_bf16 v[120:123], v[{a}:{a+3}], v[{40+8*t}:{43+8*t}], {c1}")
            A(f"v_mfma_f32_16x16x32_bf16 v[124:127], v[{a}:{a+3}], v[{44+8*t}:{47+8*t}], {c3}")
        A("v_lshrrev_b32 v20, 5, v0"); A("v_lshlrev_b32 v20, 8, v20")
        A("v_and_b32 v21, 7, v0"); A("v_lshlrev_b32 v21, 5, v21")
        A("v_bfe_u32 v22, v0, 4, 1"); A("v_lshlrev_b32 v22, 4, v22")
        A("v_add3_u32 v20, v20, v21, v22")
        A("s_mov_b32 exec_lo, 0x00ff00ff"); A("s_mov_b32 exec_hi, 0xff00ff00")
        A(f"ds_write_b128 v20, v[120:123] offset:{GU}")
        A(f"ds_write_b128 v20, v[124:127] offset:{GU+512}")
        A("s_mov_b64 exec, -1")
        A("v_lshrrev_b32 v20, 5, v0"); A("v_lshlrev_b32 v20, 9, v20")
        A("v_and_b32 v21, 31, v0"); A("v_lshlrev_b32 v21, 3, v21")
        A("v_add_u32 v20, v20, v21")
        A("s_waitcnt lgkmcnt(0)")
        A(f"ds_read_b64 v[24:25], v20 offset:{GU}")
        A(f"ds_read_b64 v[26:27], v20 offset:{GU+256}")
        A("s_waitcnt lgkmcnt(0)")
        A("v_add_f32 v28, v24, v26"); A("v_mov_b32 v29, s69")
        A("v_add_f32 v30, v25, v27"); A("v_mov_b32 v31, s69")
        self.pub(28, 37, "0", "s91")
        self.gather8(H0F)
        A("v_cvt_pk_bf16_f32 v40, v40, v42")
        A("v_lshlrev_b32 v44, 16, v40")
        A("v_and_b32 v45, 0xffff0000, v40")
        A("v_mov_b32 v46, v44"); A("v_mov_b32 v47, v45")
        A("v_permlane32_swap_b32 v46, v48")
        A("v_permlane32_swap_b32 v47, v49")
        for g, u in ((44, 48), (45, 49)):
            A(f"v_mul_f32 v50, {LOG2E ^ 0x80000000:#x}, v{g}")
            A("v_exp_f32 v50, v50")
            A("v_add_f32 v50, 1.0, v50")
            A("v_rcp_f32 v51, v50")
            A(f"v_mul_f32 v{g}, v{g}, v51")
        A("v_cvt_pk_bf16_f32 v50, v44, v45")
        A("v_lshlrev_b32 v44, 16, v50")
        A("v_and_b32 v45, 0xffff0000, v50")
        A("v_mul_f32 v44, v44, v48")
        A("v_mul_f32 v45, v45, v49")
        A("v_cvt_pk_bf16_f32 v50, v44, v45")
        A("v_lshlrev_b32 v21, 2, v0")
        A("s_mov_b32 exec_lo, -1"); A("s_mov_b32 exec_hi, 0")
        A(f"ds_write_b32 v21, v50 offset:{HL}")
        A("s_mov_b64 exec, -1")
        self.stamp(1)
        A("s_lshl_b32 s7, s2, 3")
        A("v_mov_b32 v20, s7")
        A("buffer_load_dwordx2 v[30:31], v20, s[40:43], 0 offen")
        self.srd(60, 34, 1280)
        A("s_lshl_b32 s7, s2, 10"); A(f"s_add_u32 s7, s7, {H2:#x}")
        A("v_and_b32 v36, 31, v0"); A("v_lshlrev_b32 v36, 5, v36")
        A("v_lshrrev_b32 v21, 5, v0"); A("v_lshlrev_b32 v21, 4, v21")
        A("v_add3_u32 v36, v36, v21, s7")
        A("s_waitcnt vmcnt(0)")
        A("v_lshlrev_b32 v32, 16, v30"); A("v_and_b32 v33, 0xffff0000, v30")
        A("v_lshlrev_b32 v34, 16, v31"); A("v_and_b32 v35, 0xffff0000, v31")
        self.stamp(2)
        A("s_waitcnt vmcnt(0) lgkmcnt(0)")
        A("s_barrier")
        lend = self.L("a1end")
        A("s_cmp_ge_u32 s2, 160")
        A(f"s_cbranch_scc1 {lend}")
        if "early2" not in self.exp:
            l0, l1 = self.L("y2"), self.L("y2d")
            A("v_mov_b32 v23, 0")
            A(f"s_mov_b32 s14, {SPIN_LDS*4}")
            A(f"{l0}:")
            A(f"ds_read_b32 v24, v23 offset:{YCNT}")
            A("s_waitcnt lgkmcnt(0)")
            A("v_readfirstlane_b32 s15, v24")
            A("s_cmp_eq_u32 s15, 8")
            A(f"s_cbranch_scc1 {l1}")
            A("s_sub_u32 s14, s14, 1"); A("s_cmp_lg_u32 s14, 0"); A(f"s_cbranch_scc1 {l0}")
            A(f"{l1}:")
        NS = self.NS2
        SET = [40 + 4*k for k in range(NS)]
        def poll2(k):
            A(f"buffer_load_dwordx4 v[{SET[k]}:{SET[k]+3}], v36, s[56:59], 0 offen sc1")
        for k in range(NS): poll2(k)
        l0, l1 = self.L("h2"), self.L("h2d")
        A(f"s_mov_b32 s14, {SPIN_GLB}")
        A(f"{l0}:")
        for k in range(NS):
            S = SET[k]
            A(f"s_waitcnt vmcnt({NS - 1})")
            A(f"v_cmp_eq_u32 vcc, s69, v{S+1}")
            A(f"v_cmp_eq_u32_e64 s[66:67], s69, v{S+3}")
            for n in (8, 4, 2, 1):
                a, b = (S, S + 2) if n == 8 else (24, 26)
                A(f"v_add_f32_dpp v24, v{a}, v{a} row_ror:{n} row_mask:0xf bank_mask:0xf")
                A(f"v_add_f32_dpp v26, v{b}, v{b} row_ror:{n} row_mask:0xf bank_mask:0xf")
            A("s_and_b64 vcc, vcc, s[66:67]")
            A("v_add_f32_dpp v24, v24, v24 row_bcast:15 row_mask:0xa bank_mask:0xf")
            A("v_add_f32_dpp v26, v26, v26 row_bcast:15 row_mask:0xa bank_mask:0xf")
            A("s_cmp_eq_u64 vcc, -1")
            A(f"s_cbranch_scc1 {l1}")
            if "nomask" not in self.exp:
                A("s_not_b64 exec, vcc")
            poll2(k)
            if "nomask" not in self.exp:
                A("s_mov_b64 exec, -1")
        A("s_sub_u32 s14, s14, 1")
        A("s_cmp_lg_u32 s14, 0")
        A(f"s_cbranch_scc1 {l0}")
        A(f"{l1}:")
        A("s_lshl_b32 s7, s2, 3")
        A("v_mov_b32 v20, s7")
        A("v_readlane_b32 s8, v24, 31"); A("v_readlane_b32 s9, v26, 31")
        A("v_readlane_b32 s10, v24, 63"); A("v_readlane_b32 s11, v26, 63")
        A("v_add_f32 v32, s8, v32"); A("v_add_f32 v33, s9, v33")
        A("v_add_f32 v34, s10, v34"); A("v_add_f32 v35, s11, v35")
        A("v_cvt_pk_bf16_f32 v32, v32, v33")
        A("v_cvt_pk_bf16_f32 v33, v34, v35")
        A("s_mov_b64 exec, 1")
        A("buffer_store_dwordx2 v[32:33], v20, s[60:63], 0 offen")
        lne = self.L("noep")
        A("s_cmp_lg_u32 s2, 0")
        A(f"s_cbranch_scc1 {lne}")
        A(f"v_mov_b32 v20, {EPOCH:#x}")
        A("v_mov_b32 v21, s69")
        A("buffer_store_dword v21, v20, s[56:59], 0 offen")
        A(f"{lne}:")
        A("s_mov_b64 exec, -1")
        A(f"{lend}:")
        self.stamp(3)
        if self.stamps and self.dbg:
            self.dbg_stamps([1, 3], 14)
        elif self.stamps:
            self.write_stamps(19, 3, k0=1)
        A("s_endpgm")

    def build(self):
        A = self.A
        A(f"; @launch grid=(256,1,1) block=(640,1,1) lds={LDS_SIZE}")
        A('.amdgcn_target "amdgcn-amd-amdhsa--gfx950"')
        A(".text"); A(f".globl {KN}"); A(".p2align 8"); A(f".type {KN},@function"); A(f"{KN}:")
        self.prologue()
        self.streaming()
        A("L_aux:")
        self.aux_common()
        A("s_cmp_eq_u32 s3, 9")
        A("s_cbranch_scc1 L_aux1")
        self.aux0()
        A("L_aux1:")
        self.aux1()
        A("L_end:")
        A("s_endpgm")
        nv = 168
        A('.section .rodata,"a"'); A(".p2align 6"); A(f".amdhsa_kernel {KN}")
        A(f"  .amdhsa_next_free_vgpr {nv}"); A("  .amdhsa_next_free_sgpr 102"); A(f"  .amdhsa_accum_offset {nv}")
        A("  .amdhsa_group_segment_fixed_size 0"); A("  .amdhsa_kernarg_size 96"); A("  .amdhsa_user_sgpr_count 2")
        A("  .amdhsa_user_sgpr_kernarg_segment_ptr 1"); A("  .amdhsa_system_sgpr_workgroup_id_x 1"); A(".end_amdhsa_kernel")
        return HDR + A.finish()


if __name__ == "__main__":
    ap = argparse.ArgumentParser()
    ap.add_argument("-o", default=f"cdna_kernels/{NAME}.s")
    ap.add_argument("--D", type=int, default=4)
    ap.add_argument("--DV", type=int, default=0)
    ap.add_argument("--N1", type=int, default=24)
    ap.add_argument("--DW", type=int, default=10)
    ap.add_argument("--gmlpos", type=int, default=24)
    ap.add_argument("--stamps", action="store_true")
    ap.add_argument("--map", default="xcd")
    ap.add_argument("--exp", default="")
    ap.add_argument("--nohint", action="store_true")
    ap.add_argument("--NS1", type=int, default=1)
    ap.add_argument("--NS2", type=int, default=1)
    ap.add_argument("--budget", type=int, default=2)
    a = ap.parse_args()
    g = G(D=a.D, DV=a.DV, N1=a.N1, DW=a.DW, stamps=a.stamps, gmlpos=a.gmlpos, mapping=a.map, exp=a.exp, hint=not a.nohint, NS1=a.NS1, NS2=a.NS2, budget=a.budget)
    open(a.o, "w").write(g.build())
    print("wrote", a.o)
```

```python
import sys, os, argparse
sys.path.insert(0, os.path.dirname(os.path.abspath(__file__)))
from asmlib import Asm

NAME = "parallel_sum__gqa_block_cached__glu_gated_swiglu__decode"
KN = NAME + "_kernel"
HDR = open(f"cdna_kernels/{NAME}.s.ref").read().split("; Override launch")[0]

H0Q, H0F, H1O, H1ML = 0x0, 0x40000, 0x80000, 0xC0000
GOFF = 0x100000
H2, EPOCH, STAMP = 0x1D0000, 0x1F8000, 0x200000
WS_SIZE = 0x400000
NLOC = 64
LCG_A, LCG_C = 0x41C64E6D, 0x3039
XN0, XN1, QL, HL = 0x000, 0x500, 0xA00, 0xB00
QFLAG, GFLAG, GML, TAGL, YCNT, MLF, ML = 0xB80, 0xB84, 0xB88, 0xB90, 0xB98, 0xBA0, 0xBC0
OL, YL, GU = 0xC00, 0x1C00, 0x2C00
LDS_SIZE = 0x3000
LOG2E = 0x3FB8AA3B
SCALE = 0x3DB504F3
OOB = 0x40000000
SPIN_LDS = 1 << 16
SPIN_GLB = 1 << 12
RING = 40


class G:
    def __init__(self, D=4, DV=None, N1=24, DW=10, stamps=False, gmlpos=24, mapping="xcd", exp="", hint=True, NS1=1, NS2=1, budget=2):
        self.exp = set(exp.split(",")) if exp else set()
        self.mapping = mapping
        self.A = Asm()
        self.D, self.N1, self.DW, self.stamps, self.gmlpos = D, N1, DW, stamps, gmlpos
        self.DV = DV if DV else D
        self.hint = hint
        self.NS1, self.NS2, self.budget = NS1, NS2, budget
        self.cpf2 = "cpf2" in self.exp
        self.dbg = "dbg" in self.exp
        self.dbgwg = 0
        for x in self.exp:
            if x.startswith("dbgwg"): self.dbgwg = int(x[5:])
        self.lbl = 0
        self.in_stream = False

    def L(self, base):
        self.lbl += 1
        return f"L_{base}_{self.lbl}"

    def kstamp(self, k):
        if self.stamps and "kst" in self.exp:
            self.A(f"s_memrealtime s[{70+2*k}:{71+2*k}]")

    def stamp(self, k):
        if self.in_stream and "kst" in self.exp: return
        if self.stamps:
            self.A(f"s_memrealtime s[{70+2*k}:{71+2*k}]")

    def write_stamps(self, first_slot, n, vt=4, k0=0):
        if not self.stamps: return
        A = self.A
        A("s_waitcnt lgkmcnt(0)")
        A("s_mov_b64 exec, 1")
        A(f"s_lshl_b32 s68, s2, 8")
        A(f"s_add_u32 s68, s68, {STAMP + first_slot*8}")
        A(f"v_mov_b32 v{vt}, s68")
        for k in range(n):
            A(f"v_mov_b32 v{vt+2}, s{70+2*(k+k0)}")
            A(f"v_mov_b32 v{vt+3}, s{71+2*(k+k0)}")
            A(f"buffer_store_dwordx2 v[{vt+2}:{vt+3}], v{vt}, s[56:59], 0 offen offset:{k*8}")
            A("s_waitcnt vmcnt(0)")
        A("s_mov_b64 exec, -1")

    def dbg_stamps(self, ks, first):
        A = self.A
        l = self.L("nodbg")
        A("s_waitcnt lgkmcnt(0)")
        self.srd(96, 36, 256)
        A(f"s_cmp_lg_u32 s2, {self.dbgwg}")
        A(f"s_cbranch_scc1 {l}")
        A("s_mov_b64 exec, 1")
        A("v_mov_b32 v4, 0")
        for i, k in enumerate(ks):
            A(f"s_sub_u32 s68, s{70+2*k}, s70")
            A("v_mov_b32 v6, s68")
            A(f"buffer_store_dword v6, v4, s[96:99], 0 offen offset:{(first+i)*4}")
        A("s_waitcnt vmcnt(0)")
        A("s_mov_b64 exec, -1")
        A(f"{l}:")

    def srd(self, base, lo, size):
        A = self.A
        A(f"s_mov_b32 s{base}, s{lo}"); A(f"s_mov_b32 s{base+1}, s{lo+1}")
        A(f"s_mov_b32 s{base+2}, {size:#x}"); A(f"s_mov_b32 s{base+3}, 0x20000")

    def spin_lds(self, off, vtmp, vzero, scnt="s14", stmp="s15"):
        A = self.A
        l0, l1 = self.L("sp"), self.L("spd")
        A(f"v_mov_b32 v{vzero}, 0")
        A(f"s_mov_b32 {scnt}, {SPIN_LDS}")
        A(f"{l0}:")
        A(f"ds_read_b32 v{vtmp}, v{vzero} offset:{off}")
        A("s_waitcnt lgkmcnt(0)")
        A(f"v_readfirstlane_b32 {stmp}, v{vtmp}")
        A("s_nop 0")
        A(f"s_cmp_lg_u32 {stmp}, 0")
        A(f"s_cbranch_scc1 {l1}")
        A(f"s_sub_u32 {scnt}, {scnt}, 1")
        A(f"s_cmp_lg_u32 {scnt}, 0")
        A(f"s_cbranch_scc1 {l0}")
        A(f"{l1}:")

    def red16(self, op, v):
        A = self.A
        for n in (8, 4, 2, 1):
            A(f"{op}_dpp v{v}, v{v}, v{v} row_ror:{n} row_mask:0xf bank_mask:0xf")

    def red64_lane63(self, op, v):
        A = self.A
        self.red16(op, v)
        A(f"{op}_dpp v{v}, v{v}, v{v} row_bcast:15 row_mask:0xa bank_mask:0xf")
        A(f"{op}_dpp v{v}, v{v}, v{v} row_bcast:31 row_mask:0xc bank_mask:0xf")

    def red8(self, op, v):
        A = self.A
        A(f"{op}_dpp v{v}, v{v}, v{v} quad_perm:[1,0,3,2] row_mask:0xf bank_mask:0xf")
        A(f"{op}_dpp v{v}, v{v}, v{v} quad_perm:[2,3,0,1] row_mask:0xf bank_mask:0xf")
        A(f"{op}_dpp v{v}, v{v}, v{v} row_half_mirror row_mask:0xf bank_mask:0xf")

    def masks(self, m0, t0, t1):
        A = self.A
        A(f"v_and_b32 v{t0}, 1, v0")
        A(f"v_lshlrev_b32 v{t0}, 4, v{t0}")
        A(f"v_mov_b32 v{t1}, 0xffff")
        A(f"v_lshlrev_b32 v{t0}, v{t0}, v{t1}")
        A(f"v_bfe_u32 v{t1}, v0, 1, 2")
        A(f"v_mov_b32 v{m0}, 1")
        A(f"v_lshlrev_b32 v{t1}, v{t1}, v{m0}")
        for r in range(4):
            A(f"v_bfe_i32 v{m0+r}, v{t1}, {r}, 1")
        for r in range(4):
            A(f"v_and_b32 v{m0+r}, v{m0+r}, v{t0}")

    def layernorm(self, xn_off):
        A = self.A
        for i in range(5):
            A(f"v_lshlrev_b32 v{10+2*i}, 16, v{4+i}")
            A(f"v_and_b32 v{11+2*i}, 0xffff0000, v{4+i}")
        A("v_add_f32 v20, v10, v11")
        for i in range(2, 10):
            A(f"v_add_f32 v20, v20, v{10+i}")
        self.red64_lane63("v_add_f32", 20)
        A("v_readlane_b32 s14, v20, 63")
        A(f"v_mov_b32 v21, 0x3acccccd")
        A("v_mul_f32 v21, s14, v21")
        A("v_sub_f32 v22, v10, v21")
        A("v_mul_f32 v20, v22, v22")
        for i in range(1, 10):
            A(f"v_sub_f32 v22, v{10+i}, v21")
            A("v_fmac_f32 v20, v22, v22")
        self.red64_lane63("v_add_f32", 20)
        A("v_readlane_b32 s14, v20, 63")
        A(f"v_mov_b32 v22, 0x3acccccd")
        A("v_mul_f32 v22, s14, v22")
        A("v_cvt_pk_bf16_f32 v23, v21, v22")
        A("v_lshlrev_b32 v21, 16, v23")
        A("v_and_b32 v22, 0xffff0000, v23")
        A("v_add_f32 v22, 0x3727c5ac, v22")
        A("v_cvt_pk_bf16_f32 v22, v22, v22")
        A("v_and_b32 v22, 0xffff0000, v22")
        A("v_sqrt_f32 v22, v22")
        A("v_cvt_pk_bf16_f32 v22, v22, v22")
        A("v_and_b32 v22, 0xffff0000, v22")
        A("v_rcp_f32 v23, v22")
        for i in range(5):
            a, b = 10 + 2*i, 11 + 2*i
            A(f"v_sub_f32 v{a}, v{a}, v21")
            A(f"v_sub_f32 v{b}, v{b}, v21")
            A(f"v_cvt_pk_bf16_f32 v24, v{a}, v{b}")
            A(f"v_lshlrev_b32 v{a}, 16, v24")
            A(f"v_and_b32 v{b}, 0xffff0000, v24")
            A(f"v_mul_f32 v25, v{a}, v23")
            A(f"v_mul_f32 v26, v{b}, v23")
            A(f"v_fma_f32 v27, -v25, v22, v{a}")
            A(f"v_fma_f32 v28, -v26, v22, v{b}")
            A(f"v_fmac_f32 v25, v27, v23")
            A(f"v_fmac_f32 v26, v28, v23")
            A(f"v_cvt_pk_bf16_f32 v{4+i}, v25, v26")
        A("v_lshlrev_b32 v9, 2, v0")
        A(f"ds_write2st64_b32 v9, v4, v5 offset0:{xn_off//256} offset1:{xn_off//256+1}")
        A(f"ds_write2st64_b32 v9, v6, v7 offset0:{xn_off//256+2} offset1:{xn_off//256+3}")
        A(f"ds_write_b32 v9, v8 offset:{xn_off+1024}")

    def check_tags(self, regs, tmp, tmp2):
        A = self.A
        if len(regs) == 2:
            A(f"v_cmp_eq_u32 vcc, s69, v{regs[0]}")
            A(f"v_cmp_eq_u32_e64 s[66:67], s69, v{regs[1]}")
            A("s_nop 1")
            A("s_and_b64 vcc, vcc, s[66:67]")
        else:
            for op, t in (("min", tmp), ("max", tmp2)):
                A(f"v_{op}3_u32 v{t}, v{regs[0]}, v{regs[1]}, v{regs[2]}")
                i = 3
                while i < len(regs):
                    if i + 1 < len(regs):
                        A(f"v_{op}3_u32 v{t}, v{t}, v{regs[i]}, v{regs[i+1]}"); i += 2
                    else:
                        A(f"v_{op}_u32 v{t}, v{t}, v{regs[i]}"); i += 1
            A(f"v_cmp_eq_u32 vcc, s69, v{tmp}")
            A(f"v_cmp_eq_u32_e64 s[66:67], s69, v{tmp2}")
            A("s_nop 1")
            A("s_and_b64 vcc, vcc, s[66:67]")
        A("s_cmp_eq_u64 vcc, -1")

    def spin_init(self, sc):
        A = self.A
        A("s_cmp_eq_u32 s90, 0")
        A(f"s_cselect_b32 {sc}, {NLOC}, {SPIN_GLB}")

    def spin_next(self, sc, lloop, ldone):
        A = self.A
        A(f"s_sub_u32 {sc}, {sc}, 1")
        A(f"s_cmp_lg_u32 {sc}, 0")
        A(f"s_cbranch_scc1 {lloop}")
        A("s_cmp_lg_u32 s90, 0")
        A(f"s_cbranch_scc1 {ldone}")
        A(f"s_mov_b32 s90, {GOFF:#x}")
        A(f"s_mov_b32 {sc}, {SPIN_GLB}")
        A(f"s_branch {lloop}")

    def poll_loop(self, issue, check_regs, tmp, tmp2, sc="s14"):
        A = self.A
        l0, l1 = self.L("pl"), self.L("pld")
        self.spin_init(sc)
        A(f"{l0}:")
        issue()
        A("s_waitcnt vmcnt(0)")
        self.check_tags(list(check_regs), tmp, tmp2)
        A(f"s_cbranch_scc1 {l1}")
        self.spin_next(sc, l0, l1)
        A(f"{l1}:")

    def gather8(self, base_const):
        A = self.A
        A("s_lshl_b32 s7, s4, 13")
        if base_const: A(f"s_add_u32 s7, s7, {base_const:#x}")
        A("v_lshlrev_b32 v20, 4, v0")
        A("v_add_u32 v20, s7, v20")
        A("v_add_u32 v21, 0x1000, v20")
        def issue():
            for sp in range(8):
                A(f"buffer_load_dwordx4 v[{40+4*sp}:{43+4*sp}], v{20 + (sp >> 2)}, s[56:59], s90 offen offset:{(sp & 3)*1024} sc1")
        self.poll_loop(issue, [41 + 2*i for i in range(16)], 22, 23)
        for sp in range(1, 8):
            A(f"v_add_f32 v40, v40, v{40+4*sp}")
            A(f"v_add_f32 v42, v42, v{42+4*sp}")

    def pub(self, regs, va, loc_soff, glob_soff):
        A = self.A
        A(f"buffer_store_dwordx4 v[{regs}:{regs+3}], v{va}, s[56:59], {loc_soff} offen")
        A(f"buffer_store_dwordx4 v[{regs}:{regs+3}], v{va}, s[56:59], {glob_soff} offen sc1")

    def get_tag(self, v):
        A = self.A
        A(f"v_readfirstlane_b32 s68, v{v}")
        A(f"s_mul_i32 s69, s68, {LCG_A:#x}")
        A(f"s_add_u32 s69, s69, {LCG_C:#x}")

    def prologue(self):
        A = self.A
        A("s_cmp_ge_u32 s2, 256")
        A("s_cbranch_scc1 L_end")
        if self.stamps:
            A("s_memrealtime s[70:71]")
        A("s_load_dwordx16 s[16:31], s[0:1], 0")
        A("s_load_dwordx8 s[32:39], s[0:1], 64")
        A("v_lshrrev_b32 v1, 6, v0")
        A("v_and_b32 v0, 63, v0")
        A("s_and_b32 s4, s2, 7")
        A("v_readfirstlane_b32 s3, v1")
        if self.mapping == "xcd":
            A("s_lshr_b32 s5, s2, 3")
            A("s_and_b32 s6, s5, 3")
            A("s_lshl_b32 s4, s4, 2")
            A("s_add_u32 s4, s4, s6")
            A("s_lshr_b32 s5, s5, 2")
        else:
            A("s_mov_b32 s5, s4")
            A("s_lshr_b32 s4, s2, 3")
        A("s_lshl_b32 s6, s4, 3")
        A("s_add_u32 s6, s6, s5")
        if "cpf" in self.exp:
            A("s_cmp_lt_u32 s3, 8")
            A("s_cbranch_scc1 L_stream")
            A("s_getpc_b64 s[94:95]")
            A("s_sub_u32 s7, s3, 8")
            A("s_lshl_b32 s7, s7, 13")
            A("v_lshlrev_b32 v2, 7, v0")
            A("v_add_u32 v2, s7, v2")
            A("global_load_dword v167, v2, s[94:95]")
            if self.cpf2:
                A("v_add_u32 v2, 0x4000, v2")
                A("global_load_dword v166, v2, s[94:95]")
            A("s_cmp_eq_u32 s3, 9")
            A("s_cbranch_scc1 L_aux1")
            A("s_branch L_aux0")
            A("L_stream:")
        else:
            A("s_cmp_eq_u32 s3, 9")
            A("s_cbranch_scc1 L_aux1")
            A("s_cmp_eq_u32 s3, 8")
            A("s_cbranch_scc1 L_aux0")

    def streaming(self):
        A = self.A
        self.in_stream = True
        D, N1 = self.D, self.N1
        A("s_lshl_b32 s7, s4, 21")
        A("s_lshl_b32 s8, s5, 18")
        A("s_add_u32 s7, s7, s8")
        A("s_lshl_b32 s8, s3, 10")
        A("s_add_u32 s7, s7, s8")
        A("v_bfe_u32 v36, v0, 2, 2")
        A("v_lshlrev_b32 v36, 8, v36")
        A("v_lshrrev_b32 v2, 4, v0")
        A("v_lshlrev_b32 v2, 6, v2")
        A("v_and_b32 v3, 3, v0")
        A("v_lshlrev_b32 v3, 4, v3")
        A("v_add3_u32 v36, v36, v2, v3")
        A("v_add_u32 v36, s7, v36")
        A("v_lshlrev_b32 v1, 4, v0")
        A("v_add_u32 v1, s7, v1")
        A("s_mov_b32 s42, 0x4000000"); A("s_mov_b32 s43, 0x20000")
        A("s_mov_b32 s7, 0")
        A("s_waitcnt lgkmcnt(0)")
        A("s_mov_b32 s40, s18"); A("s_mov_b32 s41, s19")
        loads = [("K", j) for j in range(32)] + [("V", j) for j in range(32)] + [("W", j) for j in range(6)]
        NL = len(loads)
        st = dict(issued=0, arrived=-1)
        consumed = set()

        def slot(i): return RING + (i % 32) * 4

        def issue(i):
            kind, j = loads[i]
            r = slot(i)
            if i >= 32: assert (i - 32) in consumed, f"slot for load {i} not free"
            if kind in "KV":
                srd = "s[40:43]" if kind == "K" else "s[44:47]"
                va = "v36" if kind == "K" else "v1"
                if "knat" in self.exp: va = "v1"
                if kind == "V" and j == 0:
                    A("s_mov_b32 s7, 0")
                A(f"buffer_load_dwordx4 v[{r}:{r+3}], {va}, {srd}, s7 offen nt")
                if j < 31:
                    A("s_add_u32 s7, s7, 0x2000")
            else:
                if j < 2:
                    A(f"buffer_load_dwordx4 v[{r}:{r+3}], v3, s[52:55], 0 offen offset:{j*1280} nt")
                else:
                    A(f"buffer_load_dwordx4 v[{r}:{r+3}], v2, s[48:51], 0 offen offset:{(j-2)*1280} nt")
            st["issued"] += 1

        def need(i):
            if st["arrived"] >= i: return
            A(f"s_waitcnt vmcnt({st['issued'] - 1 - i})")
            st["arrived"] = i

        def kpost(p):
            acc = 20 if (p & 1) == 0 else 26
            A(f"v_cndmask_b32_e64 v30, v{acc}, v{acc+1}, s[8:9]")
            A(f"v_cndmask_b32_e64 v30, v30, v{acc+2}, s[10:11]")
            A(f"v_cndmask_b32_e64 v30, v30, v{acc+3}, s[12:13]")
            A("v_add_f32_dpp v30, v30, v30 quad_perm:[1,0,3,2] row_mask:0xf bank_mask:0xf")
            S = 24 + (p >> 2)
            if (p & 3) == 0:
                A(f"v_add_f32_dpp v{S}, v30, v30 quad_perm:[2,3,0,1] row_mask:0xf bank_mask:0xf")
            else:
                A(f"v_add_f32_dpp v30, v30, v30 quad_perm:[2,3,0,1] row_mask:0xf bank_mask:0xf")
                m = 8 + 2 * ((p & 3) - 1)
                A(f"v_cndmask_b32_e64 v{S}, v{S}, v30, s[{m}:{m+1}]")

        def kgroup(p):
            acc = 20 if (p & 1) == 0 else 26
            for t in range(4):
                r = slot(4*p + t)
                c = "0" if t == 0 else f"v[{acc}:{acc+3}]"
                A(f"v_mfma_f32_16x16x32_bf16 v[{acc}:{acc+3}], v[{r}:{r+3}], v[{4+4*t}:{7+4*t}], {c}")
                consumed.add(4*p + t)
            if p > 0: kpost(p - 1)

        def softmax():
            kpost(7)
            A("v_cvt_pk_bf16_f32 v26, v24, v25")
            A("v_lshlrev_b32 v24, 16, v26")
            A("v_and_b32 v25, 0xffff0000, v26")
            A(f"v_mul_f32 v24, {SCALE:#x}, v24")
            A(f"v_mul_f32 v25, {SCALE:#x}, v25")
            A("v_cvt_pk_bf16_f32 v26, v24, v25")
            A("v_lshlrev_b32 v24, 16, v26")
            A("v_and_b32 v25, 0xffff0000, v26")
            A("v_max_f32 v27, v24, v25")
            self.red64_lane63("v_max_f32", 27)
            A("v_readlane_b32 s60, v27, 63")
            A("v_subrev_f32 v24, s60, v24")
            A("v_subrev_f32 v25, s60, v25")
            A(f"v_mul_f32 v24, {LOG2E:#x}, v24")
            A(f"v_mul_f32 v25, {LOG2E:#x}, v25")
            A("v_exp_f32 v24, v24")
            A("v_exp_f32 v25, v25")
            A("s_lshl_b32 s14, s3, 3")
            A("v_mov_b32 v30, s14")
            A("v_add_f32 v27, v24, v25")
            A("v_cvt_pk_bf16_f32 v24, v24, v24")
            A("v_cvt_pk_bf16_f32 v25, v25, v25")
            self.red64_lane63("v_add_f32", 27)
            A("v_readlane_b32 s61, v27, 63")
            A("v_mov_b32 v28, s60")
            A("s_lshl_b32 s14, s3, 2")
            A("v_mov_b32 v31, s14")
            A("v_mov_b32 v29, s61")
            A("v_mov_b32 v27, 1")
            A("s_mov_b64 exec, 1")
            A(f"ds_write_b64 v30, v[28:29] offset:{ML}")
            A(f"ds_write_b32 v31, v27 offset:{MLF}")
            A("s_mov_b64 exec, -1")
            self.stamp(3)

        def tile_of(j):
            p = (j >> 2) & 3; t = j & 3
            return 24 + (j >> 4), 4 * t + p

        def buildA(j):
            P, c = tile_of(j)
            a = 12 + (j & 1) * 4
            for r in range(4):
                A(f"v_and_b32_dpp v{a+r}, v{P}, v{32+r} row_newbcast:{c} row_mask:0xf bank_mask:0xf")

        def vtile(j):
            a = 12 + (j & 1) * 4
            r = slot(32 + j)
            c = "0" if j == 0 else "v[20:23]"
            A(f"v_mfma_f32_16x16x32_bf16 v[20:23], v[{a}:{a+3}], v[{r}:{r+3}], {c}")
            consumed.add(32 + j)
            if j + 1 < 32: buildA(j + 1)

        def gml():
            self.spin_lds(GFLAG, 30, 31)
            A(f"ds_read_b64 v[28:29], v31 offset:{GML}")
            A("s_waitcnt lgkmcnt(0)")
            A("v_sub_f32 v36, s60, v28")
            A(f"v_mul_f32 v36, {LOG2E:#x}, v36")
            A("v_exp_f32 v36, v36")
            A("v_mul_f32 v36, v36, v29")

        tasks = [("kg", p, 4*p + 3) for p in range(8)] + [("sm", 0, 31)]
        for j in range(32):
            if j == self.gmlpos: tasks.append(("gml", 0, -1))
            tasks.append(("v", j, 32 + j))

        def run(t):
            kind, x, nd = t
            if kind == "kg": kgroup(x)
            elif kind == "sm":
                softmax(); buildA(0)
            elif kind == "gml": gml()
            else: vtile(x)

        for i in range(D): issue(i)
        A("s_mov_b32 s44, s20"); A("s_mov_b32 s45, s21")
        A("s_mov_b32 s46, 0x4000000"); A("s_mov_b32 s47, 0x20000")
        self.srd(48, 24, 4096 * 640 * 2)
        self.srd(52, 32, 1728 * 640 * 2)
        self.srd(56, 38, WS_SIZE)
        A("s_barrier")
        self.masks(32, 26, 27)
        for p, val in ((8, 0x22222222), (10, 0x44444444), (12, 0x88888888)):
            A(f"s_mov_b32 s{p}, {val:#x}"); A(f"s_mov_b32 s{p+1}, {val:#x}")
        A("v_lshrrev_b32 v26, 4, v0")
        A("v_and_b32 v27, 15, v0")
        A("s_mul_i32 s14, s5, 160")
        A("v_lshlrev_b32 v28, 4, v27")
        A("v_add_u32 v28, s14, v28")
        A(f"v_mov_b32 v29, {OOB:#x}")
        A("v_cmp_gt_u32 vcc, 10, v27")
        A("v_cndmask_b32 v28, v29, v28, vcc")
        A("s_lshl_b32 s14, s4, 7"); A("s_lshl_b32 s15, s3, 4"); A("s_add_u32 s14, s14, s15")
        A("s_mul_i32 s14, s14, 1280")
        A("v_mul_u32_u24 v29, 5120, v26")
        A("v_add3_u32 v2, v28, v29, s14")
        A("s_lshl_b32 s14, s4, 6"); A("s_lshl_b32 s15, s3, 3"); A("s_add_u32 s14, s14, s15")
        A("s_mul_i32 s14, s14, 1280")
        A("v_mul_u32_u24 v29, 2560, v26")
        A("v_add3_u32 v3, v28, v29, s14")
        if "nowo" in self.exp:
            A(f"v_mov_b32 v2, {OOB:#x}"); A(f"v_mov_b32 v3, {OOB:#x}")
        A("v_and_b32 v29, 1, v26")
        A("v_lshlrev_b32 v29, 4, v29")
        A("v_lshlrev_b32 v37, 5, v27")
        A("s_lshl_b32 s14, s3, 9")
        A("v_add3_u32 v37, v37, v29, s14")
        A("v_and_b32 v29, 7, v27")
        A("v_lshlrev_b32 v29, 10, v29")
        A("v_lshrrev_b32 v30, 3, v27")
        A("v_lshlrev_b32 v30, 4, v30")
        A("v_lshlrev_b32 v31, 5, v26")
        A("v_add3_u32 v38, v29, v30, v31")
        A("s_lshl_b32 s14, s4, 13"); A("s_lshl_b32 s15, s3, 7"); A("s_add_u32 s14, s14, s15")
        A(f"s_add_u32 s14, s14, {H1O:#x}")
        A("v_add_u32 v38, s14, v38")
        A("s_lshl_b32 s14, s3, 4")
        A("v_lshlrev_b32 v39, 2, v26")
        A("v_add_u32 v39, s14, v39")

        ti = 0
        qdone = False
        for i in range(D, NL):
            kind = loads[i][0]
            Dh = {"K": D, "V": self.DV, "W": self.DW}[kind]
            while i >= 32 and (i - 32) not in consumed:
                t = tasks[ti]; need(t[2]); run(t); ti += 1
            if st["issued"] - (st["arrived"] + 1) >= Dh:
                need(i - Dh)
            issue(i)
            kmap = {4: 1, 10: 2, 16: 3, 23: 4, 28: 5, 32: 6, 40: 7}
            if i in kmap: self.kstamp(kmap[i])
            if i == N1 - 1:
                self.stamp(1)
                self.spin_lds(QFLAG, 30, 31)
                A("v_lshrrev_b32 v30, 4, v0")
                A("v_lshlrev_b32 v30, 6, v30")
                A("v_and_b32 v29, 3, v0")
                A("v_lshlrev_b32 v29, 4, v29")
                A("v_add_u32 v30, v30, v29")
                A(f"ds_read_b128 v[26:29], v30 offset:{QL}")
                A(f"ds_read_b64 v[20:21], v31 offset:{TAGL}")
                for t, val in enumerate((0x000f000f, 0x00f000f0, 0x0f000f00, 0xf000f000)):
                    A(f"s_mov_b32 s{62 + 2*(t & 1)}, {val:#x}"); A(f"s_mov_b32 s{63 + 2*(t & 1)}, {val:#x}")
                    if t == 0: A("s_waitcnt lgkmcnt(0)")
                    m = 62 + 2*(t & 1)
                    for r in range(4):
                        A(f"v_cndmask_b32_e64 v{4+4*t+r}, 0, v{26+r}, s[{m}:{m+1}]")
                A("v_readfirstlane_b32 s69, v20")
                A("v_readfirstlane_b32 s90, v21")
                self.stamp(2)
                qdone = True
            if qdone:
                budget = self.budget
                while ti < len(tasks) and budget > 0 and tasks[ti][2] <= st["arrived"]:
                    t = tasks[ti]; run(t); ti += 1
                    budget -= 1
        while ti < len(tasks):
            t = tasks[ti]; need(t[2]); run(t); ti += 1
        for r in range(4):
            A(f"v_mul_f32 v{20+r}, v{20+r}, v36")
        A(f"ds_write_b128 v37, v[20:23] offset:{OL}")
        A("s_waitcnt lgkmcnt(0)")
        self.stamp(4)
        A("s_barrier")
        self.stamp(5)
        NS = self.NS1
        SET = [64 + 4*k for k in range(NS)]
        def poll1(k):
            A(f"buffer_load_dwordx4 v[{SET[k]}:{SET[k]+3}], v38, s[56:59], s90 offen sc1")
        for k in range(NS): poll1(k)
        A(f"ds_read_b32 v30, v39 offset:{HL}")
        A("s_mov_b32 s14, 0x01000100"); A("s_mov_b32 s15, 0x03020302")
        A("s_waitcnt lgkmcnt(0)")
        A("v_perm_b32 v31, v30, v30, s14")
        A("v_perm_b32 v30, v30, v30, s15")
        for r in range(4): A(f"v_and_b32 v{12+r}, v31, v{32+r}")
        for r in range(4): A(f"v_and_b32 v{16+r}, v30, v{32+r}")
        w = lambda j: slot(64 + j)
        A(f"s_waitcnt vmcnt({4 + NS})")
        A(f"v_mfma_f32_16x16x32_bf16 v[20:23], v[12:15], v[{w(0)}:{w(0)+3}], 0")
        A(f"v_mfma_f32_16x16x32_bf16 v[20:23], v[16:19], v[{w(1)}:{w(1)+3}], v[20:23]")
        l0, l1 = self.L("h1"), self.L("h1d")
        self.spin_init("s14")
        A(f"{l0}:")
        for k in range(NS):
            S = SET[k]
            A(f"s_waitcnt vmcnt({NS - 1})")
            A(f"v_cmp_eq_u32 vcc, s69, v{S+1}")
            A(f"v_cmp_eq_u32_e64 s[66:67], s69, v{S+3}")
            for n, stp in enumerate(("quad_perm:[1,0,3,2]", "quad_perm:[2,3,0,1]", "row_half_mirror")):
                a, b = (S, S + 2) if n == 0 else (24, 26)
                A(f"v_add_f32_dpp v24, v{a}, v{a} {stp} row_mask:0xf bank_mask:0xf")
                A(f"v_add_f32_dpp v26, v{b}, v{b} {stp} row_mask:0xf bank_mask:0xf")
            A("s_and_b64 vcc, vcc, s[66:67]")
            A("v_cvt_pk_bf16_f32 v24, v24, v24")
            A("v_cvt_pk_bf16_f32 v26, v26, v26")
            A("s_cmp_eq_u64 vcc, -1")
            A(f"s_cbranch_scc1 {l1}")
            poll1(k)
        self.spin_next("s14", l0, l1)
        A(f"{l1}:")
        self.stamp(6)
        for t in range(4):
            src = 24 if (t & 1) == 0 else 26
            c = 0 if t < 2 else 8
            a = 12 + (t & 1) * 4
            for r in range(4):
                A(f"v_and_b32_dpp v{a+r}, v{src}, v{32+r} row_newbcast:{c} row_mask:0xf bank_mask:0xf")
            A(f"v_mfma_f32_16x16x32_bf16 v[20:23], v[{a}:{a+3}], v[{w(2+t)}:{w(2+t)+3}], v[20:23]")
        A(f"ds_write_b128 v37, v[20:23] offset:{YL}")
        A("v_mov_b32 v30, 0"); A("v_mov_b32 v31, 1")
        A("s_mov_b64 exec, 1")
        A(f"ds_add_u32 v30, v31 offset:{YCNT}")
        A("s_mov_b64 exec, -1")
        A("s_waitcnt lgkmcnt(0)")
        self.stamp(7)
        if self.stamps and "wst" in self.exp:
            k = 4
            for kk in range(1, 8):
                if f"wst{kk}" in self.exp: k = kk
            A("s_waitcnt lgkmcnt(0)")
            A("s_mov_b64 exec, 1")
            A("s_lshl_b32 s68, s2, 8"); A("s_lshl_b32 s14, s3, 3"); A("s_add_u32 s68, s68, s14")
            A(f"s_add_u32 s68, s68, {STAMP + 16}")
            A("v_mov_b32 v4, s68")
            A(f"v_mov_b32 v6, s{70+2*k}"); A(f"v_mov_b32 v7, s{71+2*k}")
            A("buffer_store_dwordx2 v[6:7], v4, s[56:59], 0 offen")
            A("s_waitcnt vmcnt(0)")
        elif self.stamps and self.dbg:
            A("s_cmp_lg_u32 s3, 0")
            A("s_cbranch_scc1 L_end")
            self.dbg_stamps([1, 2, 3, 4, 5, 6, 7], 0)
        elif self.stamps:
            A("s_cmp_lg_u32 s3, 0")
            A("s_cbranch_scc1 L_end")
            self.write_stamps(2, 8)
        A("s_endpgm")

    def aux_common(self):
        A = self.A
        self.in_stream = False
        A("s_setprio 3")
        A("s_mov_b32 s90, 0")
        A(f"s_mov_b32 s91, {GOFF:#x}")
        A(f"v_mov_b32 v2, {EPOCH:#x}")
        A("v_lshlrev_b32 v9, 2, v0")
        A("s_mov_b32 s42, 0x500"); A("s_mov_b32 s43, 0x20000")
        A(f"s_mov_b32 s58, {WS_SIZE:#x}"); A("s_mov_b32 s59, 0x20000")
        A("s_waitcnt lgkmcnt(0)")
        A("s_mov_b32 s40, s16"); A("s_mov_b32 s41, s17")
        A("s_mov_b32 s56, s38"); A("s_mov_b32 s57, s39")
        for i in range(5):
            A(f"buffer_load_dword v{4+i}, v9, s[40:43], 0 offen offset:{i*256}")
        A("buffer_load_dword v3, v2, s[56:59], 0 offen")

    def aux0(self):
        A = self.A
        self.srd(44, 22, 640 * 4096 * 2)
        A("v_lshrrev_b32 v38, 4, v0")
        A("v_mul_u32_u24 v39, 20, v38")
        A("s_mul_i32 s7, s5, 80")
        A("v_add_u32 v39, s7, v39")
        A("v_lshlrev_b32 v39, 13, v39")
        A("v_and_b32 v38, 15, v0"); A("v_lshlrev_b32 v38, 4, v38")
        A("s_lshl_b32 s7, s4, 8")
        A("v_add3_u32 v39, v39, v38, s7")
        if "nowq" in self.exp: A(f"v_mov_b32 v39, {OOB:#x}")
        A("s_mov_b32 s7, 0")
        for t in range(20):
            A(f"buffer_load_dwordx4 v[{40+4*t}:{43+4*t}], v39, s[44:47], s7 offen nt")
            if t < 19: A("s_add_u32 s7, s7, 0x2000")
        A("v_mov_b32 v30, 0")
        A("v_lshlrev_b32 v34, 2, v0")
        A("s_mov_b64 exec, 0xffff")
        A(f"ds_write_b32 v34, v30 offset:{QFLAG}")
        A("s_mov_b64 exec, -1")
        A("s_waitcnt lgkmcnt(0)")
        A("s_barrier")
        A("s_lshl_b32 s7, s6, 10")
        A("v_lshlrev_b32 v35, 4, v0")
        A("v_add_u32 v35, s7, v35")
        A("s_lshl_b32 s7, s6, 4"); A(f"s_add_u32 s7, s7, {H1ML:#x}")
        A(f"v_mov_b32 v36, {OOB:#x}")
        A("v_mov_b32 v37, s7")
        A("v_cmp_eq_u32 vcc, 0, v0")
        A("v_cndmask_b32 v36, v36, v37, vcc")
        A("s_mul_i32 s7, s5, 20"); A("s_lshl_b32 s7, s7, 10"); A("s_lshl_b32 s10, s4, 5"); A("s_add_u32 s7, s7, s10")
        A(f"s_add_u32 s7, s7, {H2:#x}")
        A("v_lshrrev_b32 v37, 1, v0"); A("v_lshlrev_b32 v37, 10, v37")
        A("v_and_b32 v38, 1, v0"); A("v_lshlrev_b32 v38, 4, v38")
        A("v_add3_u32 v37, v37, v38, s7")
        A(f"v_mov_b32 v38, {OOB:#x}")
        A("v_cmp_gt_u32 vcc, 40, v0")
        A("v_cndmask_b32 v37, v38, v37, vcc")
        A("s_waitcnt vmcnt(20)")
        self.stamp(1)
        self.get_tag(3)
        NPW = 0
        self.layernorm(XN0)
        self.stamp(2)
        A("v_lshrrev_b32 v20, 4, v0")
        A("v_mul_u32_u24 v20, 40, v20")
        A("s_mul_i32 s7, s5, 160")
        A("v_add_u32 v20, s7, v20")
        A("s_waitcnt lgkmcnt(0)")
        for i in range(5):
            A(f"ds_read_b64 v[{10+2*i}:{11+2*i}], v20 offset:{XN0+8*i}")
        self.masks(4, 21, 22)
        A("s_mov_b32 s8, 0x01000100"); A("s_mov_b32 s9, 0x03020302")
        A("s_waitcnt lgkmcnt(0)")
        for t in range(20):
            a = 24 + (t & 1) * 4
            A(f"v_perm_b32 v21, v{10 + t//2}, v{10 + t//2}, s{8 + (t & 1)}")
            for r in range(4): A(f"v_and_b32 v{a+r}, v21, v{4+r}")
            A(f"s_waitcnt vmcnt({19 - t + NPW})")
            c = "0" if t == 0 else "v[120:123]"
            A(f"v_mfma_f32_16x16x32_bf16 v[120:123], v[{a}:{a+3}], v[{40+4*t}:{43+4*t}], {c}")
        A("s_mov_b32 s8, -1"); A("s_mov_b32 s9, 0")
        A("v_and_b32 v20, 15, v0"); A("v_lshlrev_b32 v20, 6, v20")
        A("v_bfe_u32 v21, v0, 4, 1"); A("v_lshlrev_b32 v21, 5, v21")
        A("v_lshrrev_b32 v22, 5, v0"); A("v_lshlrev_b32 v22, 4, v22")
        A("v_add3_u32 v20, v20, v21, v22")
        A("s_lshl_b32 s7, s6, 10")
        A("v_add_u32 v20, s7, v20")
        A("v_cndmask_b32_e64 v24, v122, v120, s[8:9]")
        A("v_mov_b32 v25, s69")
        A("v_cndmask_b32_e64 v26, v123, v121, s[8:9]")
        A("v_mov_b32 v27, s69")
        self.pub(24, 20, "0", "s91")
        self.stamp(3)
        self.gather8(H0Q)
        self.stamp(4)
        A("v_cvt_pk_bf16_f32 v40, v40, v42")
        A("v_lshlrev_b32 v21, 2, v0")
        A(f"ds_write_b32 v21, v40 offset:{QL}")
        A("v_mov_b32 v22, 1"); A("v_mov_b32 v23, 0"); A("v_mov_b32 v24, s69"); A("v_mov_b32 v25, s90")
        A("s_mov_b64 exec, 1")
        A(f"ds_write_b64 v23, v[24:25] offset:{TAGL}")
        A("s_waitcnt lgkmcnt(0)")
        A(f"ds_write_b32 v23, v22 offset:{QFLAG}")
        A("s_mov_b64 exec, -1")
        self.stamp(5)
        if "nopw" not in self.exp:
            A("s_xor_b32 s68, s69, 1")
            A(f"s_mov_b32 s93, {H1O:#x}")
            A("v_mov_b32 v28, 0"); A("v_mov_b32 v29, s68"); A("v_mov_b32 v30, 0"); A("v_mov_b32 v31, s68")
            A("buffer_store_dwordx4 v[28:31], v35, s[56:59], s93 offen")
            A("buffer_store_dwordx4 v[28:31], v36, s[56:59], 0 offen")
            A("s_waitcnt vmcnt(0)")
        A("v_and_b32 v20, 7, v0")
        A("v_lshlrev_b32 v21, 2, v20")
        A("v_lshlrev_b32 v20, 3, v20")
        l0, l1 = self.L("ml"), self.L("mld")
        A(f"s_mov_b32 s14, {SPIN_LDS*4}")
        A(f"{l0}:")
        A(f"ds_read_b32 v24, v21 offset:{MLF}")
        A(f"ds_read_b64 v[26:27], v20 offset:{ML}")
        A("s_waitcnt lgkmcnt(0)")
        A("v_cmp_ne_u32 vcc, 0, v24")
        A("s_nop 1")
        A("s_cmp_eq_u64 vcc, -1")
        A(f"s_cbranch_scc1 {l1}")
        A("s_sub_u32 s14, s14, 1"); A("s_cmp_lg_u32 s14, 0"); A(f"s_cbranch_scc1 {l0}")
        A(f"{l1}:")
        self.stamp(6)
        A("v_mov_b32 v28, v26")
        self.red8("v_max_f32", 28)
        A("v_sub_f32 v26, v26, v28")
        A(f"v_mul_f32 v26, {LOG2E:#x}, v26")
        A("v_exp_f32 v26, v26")
        A("v_mul_f32 v30, v26, v27")
        self.red8("v_add_f32", 30)
        A("v_mov_b32 v29, s69"); A("v_mov_b32 v31, s69")
        self.pub(28, 36, "0", "s91")
        A("s_lshl_b32 s7, s4, 7"); A(f"s_add_u32 s7, s7, {H1ML:#x}")
        A("v_lshlrev_b32 v21, 1, v20")
        A("v_add_u32 v21, s7, v21")
        def issue2():
            A("buffer_load_dwordx4 v[24:27], v21, s[56:59], s90 offen sc1")
        self.poll_loop(issue2, [25, 27], 22, 23)
        A("v_mov_b32 v28, v24")
        self.red8("v_max_f32", 28)
        A("v_sub_f32 v24, v24, v28")
        A(f"v_mul_f32 v24, {LOG2E:#x}, v24")
        A("v_exp_f32 v24, v24")
        A("v_mul_f32 v29, v24, v26")
        self.red8("v_add_f32", 29)
        A("v_rcp_f32 v30, v29")
        A("v_fma_f32 v31, -v29, v30, 1.0")
        A("v_fma_f32 v29, v31, v30, v30")
        A("v_mov_b32 v22, 1"); A("v_mov_b32 v23, 0")
        A("s_mov_b64 exec, 1")
        A(f"ds_write_b64 v23, v[28:29] offset:{GML}")
        A(f"ds_write_b32 v23, v22 offset:{GFLAG}")
        A("s_mov_b64 exec, -1")
        self.stamp(7)
        A("v_lshlrev_b32 v20, 3, v0")
        A("v_mov_b32 v41, s69"); A("v_mov_b32 v43, s69")
        A(f"s_mov_b32 s9, {H1O:#x}")
        A(f"s_mov_b32 s10, {H1O + GOFF:#x}")
        A("v_mov_b32 v65, s69"); A("v_mov_b32 v67, s69")
        A("v_mov_b32 v23, 0")
        A("s_waitcnt lgkmcnt(0)")
        A("s_barrier")
        for wv in range(8):
            A(f"ds_read_b64 v[{44+2*wv}:{45+2*wv}], v20 offset:{OL + wv*512}")
        self._sum8(44, 40, 42)
        self.pub(40, 35, "s9", "s10")
        self.stamp(8)
        l0, l1 = self.L("yw"), self.L("ywd")
        A(f"s_mov_b32 s14, {SPIN_LDS*4}")
        A(f"{l0}:")
        A(f"ds_read_b32 v24, v23 offset:{YCNT}")
        for wv in range(8):
            A(f"ds_read_b64 v[{44+2*wv}:{45+2*wv}], v20 offset:{YL + wv*512}")
        A("s_waitcnt lgkmcnt(8)")
        A("v_readfirstlane_b32 s15, v24")
        A("s_cmp_eq_u32 s15, 8")
        A(f"s_cbranch_scc1 {l1}")
        A("s_waitcnt lgkmcnt(0)")
        A("s_sub_u32 s14, s14, 1"); A("s_cmp_lg_u32 s14, 0"); A(f"s_cbranch_scc1 {l0}")
        A(f"{l1}:")
        self._sum8(44, 64, 66)
        A("buffer_store_dwordx4 v[64:67], v37, s[56:59], 0 offen sc1")
        self.stamp(9)
        if self.stamps and self.dbg:
            self.dbg_stamps([1, 3, 4, 6, 7, 8, 9], 7)
        elif self.stamps:
            A("s_getreg_b32 s14, hwreg(HW_REG_XCC_ID)")
            A("s_getreg_b32 s15, hwreg(HW_REG_HW_ID)")
            A("s_waitcnt lgkmcnt(0)")
            A("s_mov_b64 exec, 1")
            A("s_lshl_b32 s68, s2, 8"); A(f"s_add_u32 s68, s68, {STAMP}")
            A("v_mov_b32 v4, s68"); A("v_mov_b32 v8, s14"); A("v_mov_b32 v9, 0"); A("v_mov_b32 v10, s15"); A("v_mov_b32 v11, 0")
            A("buffer_store_dwordx4 v[8:11], v4, s[56:59], 0 offen")
            A("s_waitcnt vmcnt(0)")
            A("s_mov_b64 exec, -1")
            self.write_stamps(10, 9, k0=0 if "wst" in self.exp else 1)
        A("s_endpgm")

    def _sum8(self, base, d0, d1):
        A = self.A
        A("s_waitcnt lgkmcnt(0)")
        for (x, y) in ((0, 1), (2, 3), (4, 5), (6, 7)):
            A(f"v_add_f32 v{base+2*x}, v{base+2*x}, v{base+2*y}")
            A(f"v_add_f32 v{base+2*x+1}, v{base+2*x+1}, v{base+2*y+1}")
        for (x, y) in ((0, 2), (4, 6)):
            A(f"v_add_f32 v{base+2*x}, v{base+2*x}, v{base+2*y}")
            A(f"v_add_f32 v{base+2*x+1}, v{base+2*x+1}, v{base+2*y+1}")
        A(f"v_add_f32 v{d0}, v{base}, v{base+8}")
        A(f"v_add_f32 v{d1}, v{base+1}, v{base+9}")

    def aux1(self):
        A = self.A
        self.srd(44, 28, 640 * 1728 * 2)
        self.srd(48, 30, 640 * 1728 * 2)
        A("v_lshrrev_b32 v38, 3, v0")
        A("v_mul_u32_u24 v39, 10, v38")
        A("s_mul_i32 s7, s5, 80")
        A("v_add_u32 v39, s7, v39")
        A("v_mul_u32_u24 v39, 3456, v39")
        A("v_and_b32 v38, 7, v0"); A("v_lshlrev_b32 v38, 4, v38")
        A("s_lshl_b32 s7, s4, 7")
        A("s_cmp_ge_u32 s4, 27")
        A(f"s_cselect_b32 s7, {OOB:#x}, s7")
        A("v_add3_u32 v39, v39, v38, s7")
        if "now13" in self.exp: A(f"v_mov_b32 v39, {OOB:#x}")
        NT = 0
        if "tlb" in self.exp:
            A("s_lshl_b32 s7, s4, 21"); A("s_lshl_b32 s8, s5, 18"); A("s_add_u32 s7, s7, s8")
            A("v_mov_b32 v20, s7")
            self.srd(60, 20, 0x4000000)
            A("buffer_load_dword v165, v20, s[60:63], 0 offen")
            A("s_mul_i32 s7, s4, 163840")
            A("v_mov_b32 v21, s7")
            self.srd(60, 24, 4096 * 640 * 2)
            A("buffer_load_dword v164, v21, s[60:63], 0 offen")
            A("s_mul_i32 s7, s4, 81920")
            A("v_mov_b32 v22, s7")
            self.srd(60, 32, 1728 * 640 * 2)
            A("buffer_load_dword v163, v22, s[60:63], 0 offen")
            A("v_mov_b32 v23, 0")
            self.srd(60, 34, 1280)
            A("buffer_load_dword v162, v23, s[60:63], 0 offen")
            NT = 4
        A("s_barrier")
        A(f"s_waitcnt vmcnt({NT})")
        self.get_tag(3)
        A("s_lshl_b32 s7, s6, 10"); A(f"s_add_u32 s7, s7, {H0F:#x}")
        A("v_lshlrev_b32 v37, 4, v0")
        A("v_add_u32 v37, s7, v37")
        self.layernorm(XN1)
        A("s_mov_b32 s7, 0")
        for t in range(10):
            A(f"buffer_load_dwordx4 v[{40+8*t}:{43+8*t}], v39, s[44:47], s7 offen nt")
            A(f"buffer_load_dwordx4 v[{44+8*t}:{47+8*t}], v39, s[48:51], s7 offen nt")
            if t < 9: A("s_add_u32 s7, s7, 3456")
        A("v_lshrrev_b32 v20, 3, v0")
        A("v_mul_u32_u24 v20, 20, v20")
        A("s_mul_i32 s7, s5, 160")
        A("v_add_u32 v20, s7, v20")
        A(f"v_add_u32 v20, {XN1}, v20")
        A("s_waitcnt lgkmcnt(0)")
        A("ds_read2_b32 v[10:11], v20 offset0:0 offset1:1")
        A("ds_read2_b32 v[12:13], v20 offset0:2 offset1:3")
        A("ds_read_b32 v14, v20 offset:16")
        self.masks(4, 21, 22)
        A("s_mov_b32 s8, 0x01000100"); A("s_mov_b32 s9, 0x03020302")
        A("s_waitcnt lgkmcnt(0)")
        for t in range(10):
            a = 24 + (t & 1) * 4
            A(f"v_perm_b32 v21, v{10 + t//2}, v{10 + t//2}, s{8 + (t & 1)}")
            for r in range(4): A(f"v_and_b32 v{a+r}, v21, v{4+r}")
            A(f"s_waitcnt vmcnt({18 - 2*t})")
            c1 = "0" if t == 0 else "v[120:123]"
            c3 = "0" if t == 0 else "v[124:127]"
            A(f"v_mfma_f32_16x16x32_bf16 v[120:123], v[{a}:{a+3}], v[{40+8*t}:{43+8*t}], {c1}")
            A(f"v_mfma_f32_16x16x32_bf16 v[124:127], v[{a}:{a+3}], v[{44+8*t}:{47+8*t}], {c3}")
        A("v_lshrrev_b32 v20, 5, v0"); A("v_lshlrev_b32 v20, 8, v20")
        A("v_and_b32 v21, 7, v0"); A("v_lshlrev_b32 v21, 5, v21")
        A("v_bfe_u32 v22, v0, 4, 1"); A("v_lshlrev_b32 v22, 4, v22")
        A("v_add3_u32 v20, v20, v21, v22")
        A("s_mov_b32 exec_lo, 0x00ff00ff"); A("s_mov_b32 exec_hi, 0xff00ff00")
        A(f"ds_write_b128 v20, v[120:123] offset:{GU}")
        A(f"ds_write_b128 v20, v[124:127] offset:{GU+512}")
        A("s_mov_b64 exec, -1")
        A("v_lshrrev_b32 v20, 5, v0"); A("v_lshlrev_b32 v20, 9, v20")
        A("v_and_b32 v21, 31, v0"); A("v_lshlrev_b32 v21, 3, v21")
        A("v_add_u32 v20, v20, v21")
        A("s_waitcnt lgkmcnt(0)")
        A(f"ds_read_b64 v[24:25], v20 offset:{GU}")
        A(f"ds_read_b64 v[26:27], v20 offset:{GU+256}")
        A("s_waitcnt lgkmcnt(0)")
        A("v_add_f32 v28, v24, v26"); A("v_mov_b32 v29, s69")
        A("v_add_f32 v30, v25, v27"); A("v_mov_b32 v31, s69")
        self.pub(28, 37, "0", "s91")
        self.gather8(H0F)
        A("v_cvt_pk_bf16_f32 v40, v40, v42")
        A("v_lshlrev_b32 v44, 16, v40")
        A("v_and_b32 v45, 0xffff0000, v40")
        A("v_mov_b32 v46, v44"); A("v_mov_b32 v47, v45")
        A("v_permlane32_swap_b32 v46, v48")
        A("v_permlane32_swap_b32 v47, v49")
        for g, u in ((44, 48), (45, 49)):
            A(f"v_mul_f32 v50, {LOG2E ^ 0x80000000:#x}, v{g}")
            A("v_exp_f32 v50, v50")
            A("v_add_f32 v50, 1.0, v50")
            A("v_rcp_f32 v51, v50")
            A(f"v_mul_f32 v{g}, v{g}, v51")
        A("v_cvt_pk_bf16_f32 v50, v44, v45")
        A("v_lshlrev_b32 v44, 16, v50")
        A("v_and_b32 v45, 0xffff0000, v50")
        A("v_mul_f32 v44, v44, v48")
        A("v_mul_f32 v45, v45, v49")
        A("v_cvt_pk_bf16_f32 v50, v44, v45")
        A("v_lshlrev_b32 v21, 2, v0")
        A("s_mov_b32 exec_lo, -1"); A("s_mov_b32 exec_hi, 0")
        A(f"ds_write_b32 v21, v50 offset:{HL}")
        A("s_mov_b64 exec, -1")
        self.stamp(1)
        A("s_lshl_b32 s7, s2, 3")
        A("v_mov_b32 v20, s7")
        A("buffer_load_dwordx2 v[30:31], v20, s[40:43], 0 offen")
        self.srd(60, 34, 1280)
        A("s_lshl_b32 s7, s2, 10"); A(f"s_add_u32 s7, s7, {H2:#x}")
        A("v_and_b32 v36, 31, v0"); A("v_lshlrev_b32 v36, 5, v36")
        A("v_lshrrev_b32 v21, 5, v0"); A("v_lshlrev_b32 v21, 4, v21")
        A("v_add3_u32 v36, v36, v21, s7")
        A("s_waitcnt vmcnt(0)")
        A("v_lshlrev_b32 v32, 16, v30"); A("v_and_b32 v33, 0xffff0000, v30")
        A("v_lshlrev_b32 v34, 16, v31"); A("v_and_b32 v35, 0xffff0000, v31")
        self.stamp(2)
        A("s_waitcnt vmcnt(0) lgkmcnt(0)")
        A("s_barrier")
        lend = self.L("a1end")
        A("s_cmp_ge_u32 s2, 160")
        A(f"s_cbranch_scc1 {lend}")
        if "early2" not in self.exp:
            l0, l1 = self.L("y2"), self.L("y2d")
            A("v_mov_b32 v23, 0")
            A(f"s_mov_b32 s14, {SPIN_LDS*4}")
            A(f"{l0}:")
            A(f"ds_read_b32 v24, v23 offset:{YCNT}")
            A("s_waitcnt lgkmcnt(0)")
            A("v_readfirstlane_b32 s15, v24")
            A("s_cmp_eq_u32 s15, 8")
            A(f"s_cbranch_scc1 {l1}")
            A("s_sub_u32 s14, s14, 1"); A("s_cmp_lg_u32 s14, 0"); A(f"s_cbranch_scc1 {l0}")
            A(f"{l1}:")
        NS = self.NS2
        SET = [40 + 4*k for k in range(NS)]
        def poll2(k):
            A(f"buffer_load_dwordx4 v[{SET[k]}:{SET[k]+3}], v36, s[56:59], 0 offen sc1")
        for k in range(NS): poll2(k)
        l0, l1 = self.L("h2"), self.L("h2d")
        A(f"s_mov_b32 s14, {SPIN_GLB}")
        A(f"{l0}:")
        for k in range(NS):
            S = SET[k]
            A(f"s_waitcnt vmcnt({NS - 1})")
            A(f"v_cmp_eq_u32 vcc, s69, v{S+1}")
            A(f"v_cmp_eq_u32_e64 s[66:67], s69, v{S+3}")
            for n in (8, 4, 2, 1):
                a, b = (S, S + 2) if n == 8 else (24, 26)
                A(f"v_add_f32_dpp v24, v{a}, v{a} row_ror:{n} row_mask:0xf bank_mask:0xf")
                A(f"v_add_f32_dpp v26, v{b}, v{b} row_ror:{n} row_mask:0xf bank_mask:0xf")
            A("s_and_b64 vcc, vcc, s[66:67]")
            A("v_add_f32_dpp v24, v24, v24 row_bcast:15 row_mask:0xa bank_mask:0xf")
            A("v_add_f32_dpp v26, v26, v26 row_bcast:15 row_mask:0xa bank_mask:0xf")
            A("s_cmp_eq_u64 vcc, -1")
            A(f"s_cbranch_scc1 {l1}")
            if "nomask" not in self.exp:
                A("s_not_b64 exec, vcc")
            poll2(k)
            if "nomask" not in self.exp:
                A("s_mov_b64 exec, -1")
        A("s_sub_u32 s14, s14, 1")
        A("s_cmp_lg_u32 s14, 0")
        A(f"s_cbranch_scc1 {l0}")
        A(f"{l1}:")
        A("s_lshl_b32 s7, s2, 3")
        A("v_mov_b32 v20, s7")
        A("v_readlane_b32 s8, v24, 31"); A("v_readlane_b32 s9, v26, 31")
        A("v_readlane_b32 s10, v24, 63"); A("v_readlane_b32 s11, v26, 63")
        A("v_add_f32 v32, s8, v32"); A("v_add_f32 v33, s9, v33")
        A("v_add_f32 v34, s10, v34"); A("v_add_f32 v35, s11, v35")
        A("v_cvt_pk_bf16_f32 v32, v32, v33")
        A("v_cvt_pk_bf16_f32 v33, v34, v35")
        A("s_mov_b64 exec, 1")
        A("buffer_store_dwordx2 v[32:33], v20, s[60:63], 0 offen")
        lne = self.L("noep")
        A("s_cmp_lg_u32 s2, 0")
        A(f"s_cbranch_scc1 {lne}")
        A(f"v_mov_b32 v20, {EPOCH:#x}")
        A("v_mov_b32 v21, s69")
        A("buffer_store_dword v21, v20, s[56:59], 0 offen")
        A(f"{lne}:")
        A("s_mov_b64 exec, -1")
        A(f"{lend}:")
        self.stamp(3)
        if self.stamps and self.dbg:
            self.dbg_stamps([1, 3], 14)
        elif self.stamps:
            self.write_stamps(19, 3, k0=1)
        A("s_endpgm")

    def build(self):
        A = self.A
        A(f"; @launch grid=(256,1,1) block=(640,1,1) lds={LDS_SIZE}")
        A('.amdgcn_target "amdgcn-amd-amdhsa--gfx950"')
        A(".text")
        if "al" in self.exp: A(".p2align 12")
        A(f".globl {KN}"); A(".p2align 8"); A(f".type {KN},@function"); A(f"{KN}:")
        self.prologue()
        self.streaming()
        if "al" in self.exp: A(".p2align 12")
        A("L_aux0:")
        self.aux_common()
        self.aux0()
        if "al" in self.exp: A(".p2align 12")
        A("L_aux1:")
        self.aux_common()
        self.aux1()
        A("L_end:")
        A("s_endpgm")
        if "cpf" in self.exp:
            A(f".fill {(0x8000 if self.cpf2 else 0x4000)//4}, 4, 0xbf810000")
        nv = 168
        A('.section .rodata,"a"'); A(".p2align 6"); A(f".amdhsa_kernel {KN}")
        A(f"  .amdhsa_next_free_vgpr {nv}"); A("  .amdhsa_next_free_sgpr 102"); A(f"  .amdhsa_accum_offset {nv}")
        A("  .amdhsa_group_segment_fixed_size 0"); A("  .amdhsa_kernarg_size 96"); A("  .amdhsa_user_sgpr_count 2")
        A("  .amdhsa_user_sgpr_kernarg_segment_ptr 1"); A("  .amdhsa_system_sgpr_workgroup_id_x 1"); A(".end_amdhsa_kernel")
        return HDR + A.finish()


if __name__ == "__main__":
    ap = argparse.ArgumentParser()
    ap.add_argument("-o", default=f"cdna_kernels/{NAME}.s")
    ap.add_argument("--D", type=int, default=4)
    ap.add_argument("--DV", type=int, default=0)
    ap.add_argument("--N1", type=int, default=24)
    ap.add_argument("--DW", type=int, default=10)
    ap.add_argument("--gmlpos", type=int, default=24)
    ap.add_argument("--stamps", action="store_true")
    ap.add_argument("--map", default="xcd")
    ap.add_argument("--exp", default="")
    ap.add_argument("--nohint", action="store_true")
    ap.add_argument("--NS1", type=int, default=1)
    ap.add_argument("--NS2", type=int, default=1)
    ap.add_argument("--budget", type=int, default=2)
    a = ap.parse_args()
    g = G(D=a.D, DV=a.DV, N1=a.N1, DW=a.DW, stamps=a.stamps, gmlpos=a.gmlpos, mapping=a.map, exp=a.exp, hint=not a.nohint, NS1=a.NS1, NS2=a.NS2, budget=a.budget)
    open(a.o, "w").write(g.build())
    print("wrote", a.o)
```

```python
import sys, os
HDR = open('parallel_sum__gqa_block_cached__glu_gated_swiglu__decode.s.ref').read().split('; Override launch')[0]
KN = "parallel_sum__gqa_block_cached__glu_gated_swiglu__decode_kernel"
RES = 0x100000; NK = 16; PER = 300; TAG = 0x1234
def gen(X, SL, Z, ncons=7, bg=3, npl=8, early=100, fresh=None, nowr=False, wper=0, pat=1, sep=False, shared=None, tsh=6):
    L = []; A = lambda s: L.append(s)
    A(f"; @launch grid=(256,1,1) block=(512,1,1) lds=0")
    A('.amdgcn_target "amdgcn-amd-amdhsa--gfx950"')
    A(".text"); A(f".globl {KN}"); A(".p2align 8"); A(f".type {KN},@function"); A(f"{KN}:")
    A(f"  s_cmp_ge_u32 s2, 256"); A("  s_cbranch_scc1 L_end")
    A("  s_load_dwordx2 s[20:21], s[0:1], 88")
    A("  s_memrealtime s[40:41]")
    A("  v_lshrrev_b32 v1, 6, v0"); A("  v_and_b32 v0, 63, v0"); A("  v_readfirstlane_b32 s3, v1")
    A("  s_waitcnt lgkmcnt(0)")
    A("  s_add_u32 s42, s40, 6144"); A("  s_and_b32 s42, s42, 0xfffff000")
    A("  s_mov_b32 s24, s20"); A("  s_mov_b32 s25, s21"); A("  s_mov_b32 s26, 0x10000000"); A("  s_mov_b32 s27, 0x20000")
    A("  s_cmp_eq_u32 s2, 1"); A("  s_cbranch_scc1 L_prod")
    A("  s_and_b32 s4, s2, 7"); A("  s_cmp_lg_u32 s4, 1"); A("  s_cbranch_scc1 L_bg")
    A(f"  s_cmp_gt_u32 s2, {1+8*ncons}"); A("  s_cbranch_scc1 L_bg")
    A("  v_lshlrev_b32 v1, 4, v0"); A("  s_lshl_b32 s5, s3, 7"); A("  v_add_u32 v1, s5, v1"); A(f"  v_add_u32 v1, {X}, v1")
    A("  s_mov_b64 exec, 0xff")
    A("  s_mov_b32 s10, 0")
    def waituntil(sreg):
        n = len(L)
        A("  s_mov_b32 s14, 400000")
        A(f"L_w{n}:"); A("  s_memrealtime s[44:45]"); A("  s_waitcnt lgkmcnt(0)"); A(f"  s_sub_u32 s12, s44, {sreg}"); A("  s_cmp_ge_i32 s12, 0"); A(f"  s_cbranch_scc1 L_wd{n}")
        A("  s_sub_u32 s14, s14, 1"); A("  s_cmp_lg_u32 s14, 0"); A(f"  s_cbranch_scc1 L_w{n}"); A(f"L_wd{n}:")
    A("L_ck:")
    A(f"  s_mul_i32 s11, s10, {PER}"); A("  s_add_u32 s11, s11, s42"); A(f"  s_sub_u32 s11, s11, {early}")
    waituntil("s11")
    A("  s_mov_b32 s14, 20000"); A("  s_mov_b32 s15, 0")
    A(f"  s_mov_b32 s30, {TAG}")
    A("L_cp:")
    A(f"  buffer_load_dwordx4 v[4:7], v1, s[24:27], 0 offen sc1"); A("  s_waitcnt vmcnt(0)")
    for c in ["  v_cmp_eq_u32 vcc, s30, v5", "  v_cmp_eq_u32_e64 s[16:17], s30, v7", "  s_nop 3", "  s_and_b64 vcc, vcc, s[16:17]", "  s_cmp_eq_u64 vcc, 0xff"]: A(c)
    A("  s_cbranch_scc1 L_cd")
    A("  s_add_u32 s15, s15, 1")
    A("  s_sub_u32 s14, s14, 1"); A("  s_cmp_lg_u32 s14, 0"); A("  s_cbranch_scc1 L_cp")
    A("L_cd:")
    A("  s_memrealtime s[44:45]"); A("  s_waitcnt lgkmcnt(0)")
    A("  s_sub_u32 s12, s44, s42")
    A("  s_lshl_b32 s11, s2, 11"); A("  s_lshl_b32 s13, s10, 6"); A("  s_add_u32 s11, s11, s13"); A("  s_lshl_b32 s13, s3, 3"); A("  s_add_u32 s11, s11, s13"); A(f"  s_add_u32 s11, s11, {RES}")
    A("  v_mov_b32 v8, s11"); A("  v_mov_b32 v10, s12"); A("  v_mov_b32 v11, s15")
    A("  s_mov_b64 exec, 1")
    A("  buffer_store_dwordx2 v[10:11], v8, s[24:27], 0 offen")
    A("  s_waitcnt vmcnt(0)")
    A("  s_mov_b64 exec, 0xff")
    A(f"  v_add_u32 v1, {SL}, v1")
    A("  s_add_u32 s10, s10, 1"); A(f"  s_cmp_lt_u32 s10, {NK}"); A("  s_cbranch_scc1 L_ck")
    A("  s_endpgm")
    A("L_prod:")
    A("  s_cmp_lg_u32 s3, 0"); A("  s_cbranch_scc1 L_end")
    A(f"  v_lshlrev_b32 v16, 4, v0"); A(f"  v_add_u32 v16, {X}, v16")
    A(f"  v_mov_b32 v4, 1.0"); A(f"  v_mov_b32 v5, {TAG}"); A("  v_mov_b32 v6, 2.0"); A(f"  v_mov_b32 v7, {TAG}")
    A("  s_mov_b32 s10, 0")
    A("L_pk:")
    A(f"  s_mul_i32 s11, s10, {PER}"); A("  s_add_u32 s11, s11, s42")
    waituntil("s11")
    A(f"  buffer_store_dwordx4 v[4:7], v16, s[24:27], 0 offen")
    A("  s_sub_u32 s12, s44, s42")
    A("  s_waitcnt vmcnt(0)")
    A("  s_memrealtime s[46:47]"); A("  s_waitcnt lgkmcnt(0)"); A("  s_sub_u32 s13, s46, s42")
    A("  s_lshl_b32 s11, s2, 11"); A("  s_lshl_b32 s15, s10, 6"); A("  s_add_u32 s11, s11, s15"); A(f"  s_add_u32 s11, s11, {RES}")
    A("  v_mov_b32 v8, s11"); A("  v_mov_b32 v10, s12"); A("  v_mov_b32 v11, s13")
    A("  s_mov_b64 exec, 1")
    A("  buffer_store_dwordx2 v[10:11], v8, s[24:27], 0 offen")
    A("  s_waitcnt vmcnt(0)")
    A("  s_mov_b64 exec, -1")
    A(f"  v_add_u32 v16, {SL}, v16")
    A("  s_add_u32 s10, s10, 1"); A(f"  s_cmp_lt_u32 s10, {NK}"); A("  s_cbranch_scc1 L_pk")
    A("  s_endpgm")
    A("L_bg:")
    A(f"  s_add_u32 s43, s42, {NK*PER}")
    if Z is not None:
        A("  s_cmp_lg_u32 s3, 0"); A("  s_cbranch_scc1 L_bg2")
        A("  s_lshr_b32 s5, s2, 3"); A("  s_and_b32 s4, s2, 7")
        A("  s_cmp_lg_u32 s4, 1"); A("  s_cbranch_scc1 L_n3")
        A("  s_cmp_lt_u32 s5, 16"); A("  s_cbranch_scc1 L_n3"); A(f"  s_cmp_ge_u32 s5, {16+npl}"); A("  s_cbranch_scc1 L_n3")
        ex = "0xff"
        if pat == 1:
            A("  v_and_b32 v1, 7, v0"); A("  v_lshlrev_b32 v1, 7, v1")
        elif pat == 2:
            A("  v_and_b32 v1, 7, v0"); A("  v_lshlrev_b32 v1, 7, v1"); A("  v_bfe_u32 v2, v0, 3, 1"); A("  v_lshlrev_b32 v2, 4, v2"); A("  v_add_u32 v1, v1, v2"); ex = "0xffff"
        elif pat == 3:
            A("  v_lshlrev_b32 v1, 4, v0"); ex = "-1"
        elif pat == 4:
            A("  v_lshrrev_b32 v1, 2, v0"); A("  v_lshlrev_b32 v1, 7, v1"); A("  v_and_b32 v2, 3, v0"); A("  v_lshlrev_b32 v2, 4, v2"); A("  v_add_u32 v1, v1, v2"); ex = "0xffffffff"
        elif pat == 5:
            A("  v_lshrrev_b32 v1, 1, v0"); A("  v_lshlrev_b32 v1, 7, v1"); A("  v_and_b32 v2, 1, v0"); A("  v_lshlrev_b32 v2, 4, v2"); A("  v_add_u32 v1, v1, v2"); ex = "0xffff"
        elif pat == 6:
            A("  v_and_b32 v1, 7, v0"); A("  v_lshlrev_b32 v1, 7, v1"); A("  v_lshrrev_b32 v2, 5, v0"); A("  v_lshlrev_b32 v2, 4, v2"); A("  v_add_u32 v1, v1, v2"); ex = "0xff000000ff"
        if sep:
            A("  s_sub_u32 s6, s5, 16"); A("  s_lshl_b32 s6, s6, 12"); A("  v_add_u32 v1, s6, v1")
        A(f"  v_add_u32 v1, {Z}, v1"); A("  s_mov_b32 s14, 200000")
        if ex == "0xffffffff": A("  s_mov_b32 exec_hi, 0")
        elif ex == "0xff000000ff": A("  s_mov_b32 exec_lo, 0xff"); A("  s_mov_b32 exec_hi, 0xff")
        else: A(f"  s_mov_b64 exec, {ex}")
        if fresh is not None:
            A("  s_and_b32 s6, s5, 3"); A("  s_lshl_b32 s6, s6, 12"); A("  s_bfe_u32 s8, s5, 0x10002"); A("  s_lshl_b32 s8, s8, 15"); A("  s_add_u32 s6, s6, s8")
            A("  v_add_u32 v1, s6, v1"); A("  s_mov_b32 s9, 0")
        A("L_nl2:")
        if shared is not None:
            A("  s_memrealtime s[44:45]"); A("  s_waitcnt lgkmcnt(0)"); A("  s_sub_u32 s9, s44, s42"); A("  s_add_u32 s9, s9, 0x4000")
            A(f"  s_lshr_b32 s9, s9, {tsh}"); A("  s_and_b32 s8, s9, 3"); A("  s_lshl_b32 s8, s8, 12"); A("  s_lshr_b32 s9, s9, 2"); A("  s_and_b32 s9, s9, 0xff"); A("  s_lshl_b32 s9, s9, 19"); A("  s_add_u32 s9, s9, s8")
            A(f"  buffer_load_dwordx4 v[4:7], v1, s[24:27], s9 offen {shared}"); A("  s_waitcnt vmcnt(0)")
        elif fresh is not None:
            A(f"  buffer_load_dwordx4 v[4:7], v1, s[24:27], s9 offen {fresh}"); A("  s_waitcnt vmcnt(0)")
            A("  s_add_u32 s9, s9, 0x80000"); A("  s_cmp_ge_u32 s9, 0xE000000"); A("  s_cselect_b32 s9, 0x10000, s9")
        else:
            A(f"  buffer_load_dwordx4 v[4:7], v1, s[24:27], 0 offen sc1"); A("  s_waitcnt vmcnt(0)")
        A("  s_memrealtime s[44:45]"); A("  s_waitcnt lgkmcnt(0)"); A("  s_sub_u32 s12, s44, s43"); A("  s_cmp_ge_i32 s12, 0"); A("  s_cbranch_scc1 L_end")
        A("  s_sub_u32 s14, s14, 1"); A("  s_cmp_lg_u32 s14, 0"); A("  s_cbranch_scc1 L_nl2"); A("  s_endpgm")
        A("L_n3:")
        if nowr: A("  s_branch L_bg2")
        A("  s_cmp_lg_u32 s4, 3"); A("  s_cbranch_scc1 L_bg2")
        A("  s_cmp_lt_u32 s5, 8"); A("  s_cbranch_scc1 L_bg2"); A(f"  s_cmp_ge_u32 s5, 16"); A("  s_cbranch_scc1 L_bg2")
        A("  s_sub_u32 s6, s5, 8"); A("  s_lshl_b32 s6, s6, 7")
        if sep:
            assert npl <= 4
            A("  v_and_b32 v1, 7, v0"); A("  v_lshlrev_b32 v1, 4, v1"); A("  v_lshrrev_b32 v2, 3, v0"); A("  v_lshlrev_b32 v2, 12, v2"); A("  v_add_u32 v1, v1, v2")
            A("  v_add_u32 v1, s6, v1"); A(f"  v_add_u32 v1, {Z}, v1")
            if npl == 4: A("  s_mov_b32 exec_hi, 0");
            else: A(f"  s_mov_b64 exec, {(1 << (8*npl)) - 1:#x}")
            A("  s_mov_b32 s14, 200000")
        else:
            A("  v_lshlrev_b32 v1, 4, v0"); A("  v_add_u32 v1, s6, v1"); A(f"  v_add_u32 v1, {Z}, v1")
            A("  s_mov_b64 exec, 0xff"); A("  s_mov_b32 s14, 200000")
        A("L_nl3:")
        A(f"  buffer_store_dwordx4 v[4:7], v1, s[24:27], 0 offen sc1"); A("  s_waitcnt vmcnt(0)")
        if wper:
            A("  s_memrealtime s[44:45]"); A("  s_waitcnt lgkmcnt(0)"); A(f"  s_add_u32 s11, s44, {wper}")
            waituntil("s11")
        A("  s_memrealtime s[44:45]"); A("  s_waitcnt lgkmcnt(0)"); A("  s_sub_u32 s12, s44, s43"); A("  s_cmp_ge_i32 s12, 0"); A("  s_cbranch_scc1 L_end")
        A("  s_sub_u32 s14, s14, 1"); A("  s_cmp_lg_u32 s14, 0"); A("  s_cbranch_scc1 L_nl3"); A("  s_endpgm")
        A("L_bg2:")
    if bg:
        A("  s_lshl_b32 s5, s2, 3"); A("  s_add_u32 s5, s5, s3"); A("  s_mul_i32 s5, s5, 0x18000")
        A("  s_add_u32 s5, s5, 0x2000000")
        A("  v_lshlrev_b32 v1, 4, v0"); A("  v_add_u32 v1, s5, v1")
        A("  s_mov_b32 s7, 0"); A("  s_mov_b32 s14, 20000"); A("  s_mov_b32 s33, 0")
        A("L_bl:")
        for j in range(12):
            r = 4 + 4*(j % 4)
            A(f"  buffer_load_dwordx4 v[{r}:{r+3}], v1, s[24:27], s7 offen nt")
            A("  s_add_u32 s7, s7, 1024")
            A(f"  s_waitcnt vmcnt({bg-1})")
        A("  s_cmp_ge_u32 s7, 0x18000"); A("  s_cselect_b32 s7, 0, s7")
        A("  s_memrealtime s[44:45]"); A("  s_waitcnt lgkmcnt(0)"); A("  s_sub_u32 s12, s44, s43"); A("  s_cmp_ge_i32 s12, 0"); A("  s_cbranch_scc1 L_bgd")
        A("  s_sub_u32 s12, s44, s42"); A("  s_cmp_ge_i32 s12, 0"); A("  s_cselect_b32 s12, 1, 0"); A("  s_add_u32 s33, s33, s12")
        A("  s_sub_u32 s14, s14, 1"); A("  s_cmp_lg_u32 s14, 0"); A("  s_cbranch_scc1 L_bl")
        A("L_bgd:")
        A("  s_lshl_b32 s5, s2, 3"); A("  s_add_u32 s5, s5, s3"); A("  s_lshl_b32 s5, s5, 2"); A(f"  s_add_u32 s5, s5, {RES + 0x20000}")
        A("  v_mov_b32 v8, s5"); A("  v_mov_b32 v9, s33"); A("  s_mov_b64 exec, 1")
        A("  buffer_store_dword v9, v8, s[24:27], 0 offen"); A("  s_waitcnt vmcnt(0)")
    A("L_end:")
    A("  s_endpgm")
    nv = 24
    A('.section .rodata,"a"'); A(".p2align 6"); A(f".amdhsa_kernel {KN}")
    A(f"  .amdhsa_next_free_vgpr {nv}"); A("  .amdhsa_next_free_sgpr 64"); A(f"  .amdhsa_accum_offset {(nv+3)//4*4}")
    A("  .amdhsa_group_segment_fixed_size 0"); A("  .amdhsa_kernarg_size 96"); A("  .amdhsa_user_sgpr_count 2")
    A("  .amdhsa_user_sgpr_kernarg_segment_ptr 1"); A("  .amdhsa_system_sgpr_workgroup_id_x 1"); A(".end_amdhsa_kernel")
    return HDR + "\n".join(x for x in L if x) + "\n"
os.makedirs("m11", exist_ok=True)
W = lambda n, t: open(f"m11/{n}.s", "w").write(t)
X = 0x1000000
Z = 0x800000
W("none", gen(X, 1024, None))
W("s1k", gen(X, 1024, Z))
W("s16k", gen(X, 16384, Z))
W("s256k", gen(X, 262144, Z))
W("s16k_b", gen(X + 1024, 16384, Z))
W("s256k_b", gen(X + 1024, 262144, Z))
W("s16k_c", gen(X + 2048, 16384, Z))
W("s256k_c", gen(X + 2048, 262144, Z))
W("s16k_d", gen(X + 3072, 16384, Z))
W("s256k_d", gen(X + 3072, 262144, Z))

W("f_base", gen(X, 1024, Z))
W("f_fresh_sc1", gen(X, 1024, Z, fresh="sc1", nowr=True))
W("f_fresh_pl", gen(X, 1024, Z, fresh="", nowr=True))
W("f_nowr", gen(X, 1024, Z, nowr=True))
W("f_w100", gen(X, 1024, Z, wper=100))
W("f_w200", gen(X, 1024, Z, wper=200))
W("f_np1", gen(X, 1024, Z, npl=1))
W("f_bg0", gen(X, 1024, Z, bg=0))
W("f_bg2", gen(X, 1024, Z, bg=2))
W("f_bg1", gen(X, 1024, Z, bg=1))

for pat in (1, 2, 3, 4, 5, 6):
    W(f"p{pat}_n1", gen(X, 1024, Z, npl=1, pat=pat))
W("p1_n2", gen(X, 1024, Z, npl=2))
W("p1_n4", gen(X, 1024, Z, npl=4))
for pat in (1, 3, 4, 5):
    W(f"p{pat}_n4sep", gen(X, 1024, Z, npl=4, pat=pat, sep=True))

for nm, fl in (("sc1", "sc1"), ("pl", ""), ("nt", "nt")):
    W(f"sh_{nm}", gen(X, 1024, Z, shared=fl, nowr=True))
    W(f"sh_{nm}_n2", gen(X, 1024, Z, shared=fl, nowr=True, npl=2))
    W(f"sh_{nm}_sep", gen(X, 1024, Z, shared=fl, nowr=True, npl=4, sep=True))
W("sh_pl_t5", gen(X, 1024, Z, shared="", nowr=True, tsh=5))
W("sh_pl_t7", gen(X, 1024, Z, shared="", nowr=True, tsh=7))
```
